```python
import torch

def _softmax(x, axis=-1):
    return torch.softmax(x, dim=axis)

def _gelu(x):
    return torch.nn.functional.gelu(x, approximate='tanh')

def _silu(x):
    return torch.nn.functional.silu(x)

def _sigmoid(x):
    return torch.sigmoid(x)

def _layernorm(x, axis=-1, eps=1e-05):
    m = x.mean(dim=axis, keepdim=True)
    v = x.var(dim=axis, keepdim=True, unbiased=False)
    return (x - m) / torch.sqrt(v + eps)

def _scatter_add(tgt, idx, src, axis=0):
    return tgt.clone().index_add_(axis, idx, src)

def _segment_sum(src, seg, n):
    out = torch.zeros((n,) + src.shape[1:], dtype=src.dtype)
    return out.index_add_(0, seg, src)

def _pad(x, pw):
    flat = tuple((v for pair in reversed(pw) for v in pair))
    return torch.nn.functional.pad(x, flat)
kernel_name = 'adaLN_cond__sliding_block_cached__dense_activation_silu__prompt'

def setup_inputs():

    _w = lambda a: (lambda t: t.to(torch.bfloat16) if t.is_floating_point() else t)(torch.as_tensor(a))

    def _A_setup():
        B, Sq, D = (1, 2048, 512)
        Hq, Hkv, Sk, Dh = (32, 8, 2048, 128)
        assert Hq % Hkv == 0, (Hq, Hkv)
        return {'x': _w((lambda *s: torch.randn(*s, dtype=torch.bfloat16) * 0.05)(B, Sq, D)), 'k_cache': _w((lambda *s: torch.randn(*s, dtype=torch.bfloat16) * 1.6)(B, Hkv, Sk, Dh)), 'v_cache': _w((lambda *s: torch.randn(*s, dtype=torch.bfloat16) * 0.8)(B, Hkv, Sk, Dh)), 'wq': _w((lambda *s: torch.randn(*s, dtype=torch.bfloat16) * 1.6)(D, Hq * Dh) * D ** (-0.5)), 'wo': _w((lambda *s: torch.randn(*s, dtype=torch.bfloat16) * 0.8)(Hq * Dh, D) * (Hq * Dh) ** (-0.5))}
    _A_in = _A_setup()

    def _B_setup():
        B, S, D, F = (1, 2048, 512, 1792)
        return {'x': _w((lambda *s: torch.randn(*s, dtype=torch.bfloat16) * 0.05)(B, S, D)), 'w1': _w((lambda *s: torch.randn(*s, dtype=torch.bfloat16) * 1.6)(D, F) * D ** (-0.5)), 'w2': _w((lambda *s: torch.randn(*s, dtype=torch.bfloat16) * 0.2)(F, D) * F ** (-0.5))}
    _B_in = _B_setup()
    return {'A_x': _A_in['x'], 'A_k_cache': _A_in['k_cache'], 'A_v_cache': _A_in['v_cache'], 'A_wq': _A_in['wq'], 'A_wo': _A_in['wo'], 'B_x': _B_in['x'], 'B_w1': _B_in['w1'], 'B_w2': _B_in['w2'], 'c': _w((lambda *s: torch.randn(*s, dtype=torch.bfloat16) * 0.1)(1, 512) * 8.0), 'w_mod': _w((lambda *s: torch.randn(*s, dtype=torch.bfloat16) * 0.1)(512, 6 * 512) * 512 ** (-0.5) * 8.0)}

def reference(A_x, A_k_cache, A_v_cache, A_wq, A_wo, B_x, B_w1, B_w2, c, w_mod):

    def _A_ref(x, k_cache, v_cache, wq, wo):
        B, Sq, D = x.shape
        Hq, Dh = (32, 128)
        Hkv, Sk = (k_cache.shape[1], k_cache.shape[2])
        W = min(4096, max(256, Sk // 4))
        rep = Hq // Hkv
        q = (lambda x, *d: x.permute(*d))((x @ wq).reshape(B, Sq, Hq, Dh), 0, 2, 1, 3)
        k = (lambda x, n, axis: torch.repeat_interleave(x, n, dim=axis))(k_cache[:, :, Sk - W:, :], rep, axis=1)
        v = (lambda x, n, axis: torch.repeat_interleave(x, n, dim=axis))(v_cache[:, :, Sk - W:, :], rep, axis=1)
        scores = torch.einsum('bhqd,bhkd->bhqk', q, k) * Dh ** (-0.5)
        p = _softmax(scores, axis=-1)
        o = torch.einsum('bhqk,bhkd->bhqd', p, v)
        return (lambda x, *d: x.permute(*d))(o, 0, 2, 1, 3).reshape(B, Sq, Hq * Dh) @ wo

    def _B_ref(x, w1, w2):
        h = torch.einsum('bsd,df->bsf', x, w1)
        h = _silu(h)
        out = torch.einsum('bsf,fd->bsd', h, w2)
        return out
    x = A_x
    mod = (_silu(c) @ w_mod).reshape(c.shape[0], 6, 1, -1)
    sa, ca, ga, sb, cb, gb = (mod[:, 0].clone(), mod[:, 1].clone(), mod[:, 2].clone(), mod[:, 3].clone(), mod[:, 4].clone(), mod[:, 5].clone())
    h = _layernorm(x, axis=-1) * (1 + ca) + sa
    x = x + ga * _A_ref(h, A_k_cache, A_v_cache, A_wq, A_wo)
    h = _layernorm(x, axis=-1) * (1 + cb) + sb
    x = x + gb * _B_ref(h, B_w1, B_w2)
    return x
```

```python
import re

_REG = re.compile(r'^(-?)(abs\()?([vas])(?:(\d+)|\[(\d+):(\d+)\])\)?$')


def regs_of(op):
    op = op.strip()
    if op == 'vcc':
        return [('s', 'vcc')]
    if op == 'exec':
        return [('s', 'exec')]
    if op == 'm0':
        return [('s', 'm0')]
    m = _REG.match(op)
    if not m:
        return []
    k = m.group(3)
    if m.group(4) is not None:
        return [(k, int(m.group(4)))]
    return [(k, i) for i in range(int(m.group(5)), int(m.group(6)) + 1)]


TRANS = ('v_exp_f32', 'v_log_f32', 'v_rcp_f32', 'v_rsq_f32', 'v_sqrt_f32', 'v_sin_f32', 'v_cos_f32')


class Ins:
    def __init__(self, text, tag=None, kind=None, arg=None):
        self.text = text
        self.tag = tag
        self.kind = kind
        self.arg = arg
        self.rd = []
        self.wr = []
        self.cls = None
        if kind is None:
            self._parse()

    def _parse(self):
        t = self.text.split(';')[0].strip()
        sp = t.split(None, 1)
        self.mn = mn = sp[0]
        rest = sp[1] if len(sp) > 1 else ''
        parts = [p.strip() for p in re.split(r',(?![^\[]*\])', rest)] if rest else []
        mods = ''
        if parts:
            last = parts[-1].split()
            parts[-1] = last[0]
            mods = ' '.join(last[1:])
        self.ops = parts
        self.mods = mods
        R = [regs_of(p) for p in parts]
        flat = lambda xs: [r for x in xs for r in x]
        if mn.startswith('v_mfma'):
            self.cls = 'mfma'
            self.wr = R[0]
            self.A, self.B, self.C = R[1], R[2], R[3]
            self.rd = flat(R[1:])
            self.passes = 8 if '32x32x16' in mn else 4
        elif mn.startswith('ds_read') or mn.startswith('ds_bpermute') or mn.startswith('ds_swizzle'):
            self.cls = 'dsr'
            self.wr = R[0]
            self.rd = flat(R[1:])
        elif mn.startswith('ds_write'):
            self.cls = 'dsw'
            self.rd = flat(R)
        elif mn.startswith('buffer_load') or mn.startswith('global_load'):
            if 'lds' in mods.split() or 'lds' in mn:
                self.cls = 'dma'
                self.rd = flat(R) + [('s', 'm0')]
            else:
                self.cls = 'vld'
                self.wr = R[0]
                self.rd = flat(R[1:])
        elif mn.startswith('buffer_store') or mn.startswith('global_store'):
            self.cls = 'vst'
            self.rd = flat(R)
            self.data = R[0] if mn.startswith('buffer') else R[1]
        elif mn.startswith('buffer_atomic') or mn.startswith('global_atomic'):
            self.cls = 'vst'
            self.rd = flat(R)
            self.data = []
            if 'sc0' in mods.split():
                self.cls = 'vld'
                self.wr = R[0]
        elif mn in ('buffer_wbl2', 'buffer_inv'):
            self.cls = 'vst'
            self.data = []
        elif mn.startswith('s_load') or mn.startswith('s_memtime') or mn.startswith('s_memrealtime'):
            self.cls = 'smem'
            self.wr = R[0]
            self.rd = flat(R[1:])
        elif mn == 's_waitcnt':
            self.cls = 'wait'
            full = rest
            m = re.search(r'vmcnt\((\d+)\)', full)
            self.vm = int(m.group(1)) if m else None
            m = re.search(r'lgkmcnt\((\d+)\)', full)
            self.lg = int(m.group(1)) if m else None
        elif mn == 's_nop':
            self.cls = 'nop'
            self.n = int(parts[0]) + 1
        elif mn.startswith('s_'):
            self.cls = 'salu'
            if mn.startswith('s_cmp') or mn.startswith('s_cbranch') or mn.startswith('s_bitcmp') or mn in (
                    's_branch', 's_barrier', 's_endpgm', 's_setprio', 's_sleep', 's_setpc_b64'):
                self.rd = flat(R)
            else:
                self.wr = R[0] if R else []
                self.rd = flat(R[1:])
                if 'saveexec' in mn:
                    self.wr = self.wr + [('s', 'exec')]
        elif mn.startswith('v_'):
            self.cls = 'valu'
            self.wr = R[0]
            self.rd = flat(R[1:])
            if mn.startswith('v_permlane'):
                self.wr = R[0] + R[1]
                self.rd = R[0] + R[1]
            elif mn.startswith('v_fmac') or mn.startswith('v_dot2c') or 'dpp' in mn or mn.startswith('v_writelane'):
                self.rd = self.rd + R[0]
            elif mn.startswith('v_add_co') or mn.startswith('v_addc_co') or mn.startswith('v_sub_co'):
                self.wr = R[0] + R[1]
                self.rd = flat(R[2:])
            self.trans = any(mn.startswith(x) for x in TRANS)
            self.dpp = 'dpp' in mn
            self.perm = mn.startswith('v_permlane')
            self.rl = mn.startswith('v_readlane') or mn.startswith('v_readfirstlane')
        else:
            raise ValueError('unknown instruction ' + self.text)

    def cost(self):
        if self.kind is not None:
            return 0
        if self.cls == 'nop':
            return 4 * self.n
        if self.cls == 'valu' and self.trans:
            return 8
        if self.cls == 'mfma':
            return 8
        return 4


class Asm:
    LDS_LAT = 160
    VM_LAT = 1500

    def __init__(self):
        self.L = []
        self.notes = []

    def __call__(self, text, tag=None):
        for t in text.split('\n'):
            t = t.strip()
            if t:
                self.L.append(Ins(t, tag=tag))

    def add(self, item):
        if isinstance(item, Ins):
            self.L.append(item)
        elif isinstance(item, tuple):
            self(item[0], tag=item[1])
        else:
            self(item)

    def raw(self, text):
        self.L.append(Ins(text, kind='raw'))

    def label(self, name):
        self.L.append(Ins(name + ':', kind='label'))

    def reset(self):
        self.L.append(Ins('', kind='reset'))

    def wait_vm(self, tag):
        self.L.append(waitvm(tag))

    def wait_lds(self, tag):
        self.L.append(waitlds(tag))

    def loop_start(self, name):
        self.L.append(Ins('', kind='lstart', arg=name))
        self.label(name)

    def loop_end(self, name):
        self.L.append(Ins('', kind='lend', arg=name))

    def _trace(self, L, reps=3):
        out = []
        stack = []
        i = 0
        cnt = {}
        while i < len(L):
            x = L[i]
            if x.kind == 'lstart':
                stack.append(i)
                cnt[i] = 0
            elif x.kind == 'lend':
                s = stack[-1]
                cnt[s] += 1
                if cnt[s] < reps:
                    i = s + 1
                    continue
                stack.pop()
            else:
                out.append(i)
            i += 1
        return out

    def _insert_waits(self):
        L = self.L
        need = {}
        vmq, lgq = [], []
        now = 0
        mf_free = 0

        def require(i, q, idx, which, lat, cap):
            n = len(q) - 1 - idx
            k = idx
            while k + 1 < len(q) and now - q[k + 1][3] > lat:
                k += 1
            n2 = len(q) - 1 - k
            if n < cap:
                d = need.setdefault(i, {})
                d[which] = min(d.get(which, 99), n2)
                del q[:k + 1]
            else:
                del q[:idx + 1]

        for i in self._trace(L):
            x = L[i]
            if x.kind == 'reset':
                vmq.clear()
                lgq.clear()
                continue
            if x.kind == 'waitvm':
                idx = max((j for j, e in enumerate(vmq) if e[2] == x.arg), default=-1)
                if idx >= 0:
                    require(i, vmq, idx, 'vm', self.VM_LAT, 63)
                continue
            if x.kind == 'waitlds':
                idx = max((j for j, e in enumerate(lgq) if e[2] == x.arg), default=-1)
                if idx >= 0:
                    require(i, lgq, idx, 'lg', self.LDS_LAT, 15)
                continue
            if x.kind is not None:
                continue
            touched = set(x.rd) | set(x.wr)
            idx = max((j for j, e in enumerate(vmq) if e[1] & touched), default=-1)
            if idx >= 0:
                require(i, vmq, idx, 'vm', self.VM_LAT, 63)
            idx = max((j for j, e in enumerate(lgq) if e[1] & touched), default=-1)
            if idx >= 0:
                if any(e[0] == 'smem' for e in lgq):
                    need.setdefault(i, {})['lg'] = 0
                    lgq.clear()
                else:
                    require(i, lgq, idx, 'lg', self.LDS_LAT, 15)
            if x.cls == 'wait':
                if x.vm is not None and len(vmq) > x.vm:
                    del vmq[:len(vmq) - x.vm]
                if x.lg is not None and len(lgq) > x.lg:
                    if x.lg == 0 or not any(e[0] == 'smem' for e in lgq):
                        del lgq[:len(lgq) - x.lg]
            elif x.cls in ('vld', 'vst', 'dma'):
                vmq.append((x.cls, set(x.wr), x.tag, now))
            elif x.cls in ('dsr', 'dsw', 'smem'):
                lgq.append((x.cls, set(x.wr), x.tag, now))
            if x.cls == 'mfma':
                now = max(now, mf_free)
                mf_free = now + 4 * x.passes
            now += x.cost()
        out = []
        for i, x in enumerate(L):
            if i in need:
                d = need[i]
                s = 's_waitcnt'
                if 'vm' in d:
                    s += f" vmcnt({d['vm']})"
                if 'lg' in d:
                    s += f" lgkmcnt({d['lg']})"
                prev = out[-1] if out else None
                if prev is not None and prev.kind is None and prev.cls == 'wait' and getattr(prev, 'auto', False):
                    vm = [v for v in (prev.vm, d.get('vm')) if v is not None]
                    lg = [v for v in (prev.lg, d.get('lg')) if v is not None]
                    s = 's_waitcnt' + (f' vmcnt({min(vm)})' if vm else '') + (f' lgkmcnt({min(lg)})' if lg else '')
                    out.pop()
                w = Ins(s)
                w.auto = True
                out.append(w)
            if x.kind not in ('waitvm', 'waitlds'):
                out.append(x)
        self.L = out

    def _hazards(self):
        L = self.L
        pad = {}
        hist = []
        pos = 0
        for i in self._trace(L):
            x = L[i]
            if x.kind == 'reset':
                hist = []
                continue
            if x.kind is not None:
                continue
            req = 0
            rd, wr = set(x.rd), set(x.wr)
            for (p, pp) in hist:
                dist = pos - pp - 1
                n = 0
                pw = set(p.wr)
                if p.cls == 'valu':
                    vw = {r for r in pw if r[0] in 'va'}
                    sw = {r for r in pw if r[0] == 's'}
                    if x.cls == 'mfma' and vw & rd:
                        n = max(n, 2)
                    if x.cls == 'valu':
                        if p.trans and not x.trans and vw & rd:
                            n = max(n, 1)
                        if (x.perm or x.dpp) and vw & rd:
                            n = max(n, 2)
                        if x.rl and vw & rd:
                            n = max(n, 1)
                        implicit_vcc = ('s', 'vcc') in sw and (x.mn.startswith('v_cndmask') or x.mn.startswith('v_addc'))
                        if sw & rd or implicit_vcc:
                            n = max(n, 4 if x.rl else 2)
                        if ('sdwa' in p.mn or 'op_sel' in p.mods) and vw & (rd | wr):
                            n = max(n, 1)
                    if p.trans and x.cls in ('dsw', 'vst', 'dsr', 'vld', 'dma') and vw & rd:
                        n = max(n, 1)
                    if x.cls in ('vld', 'vst', 'dma') and sw & rd:
                        n = max(n, 5)
                    if x.cls in ('salu', 'smem') and sw & rd:
                        n = max(n, 1)
                elif p.cls == 'mfma':
                    big = p.passes == 8
                    if x.cls == 'mfma':
                        if pw & (set(x.A) | set(x.B)):
                            n = max(n, 12 if big else 8)
                        if pw & set(x.C) and not (p.wr == x.C and p.passes == x.passes):
                            n = max(n, 10 if big else 6)
                    elif x.cls in ('valu', 'dsr', 'dsw', 'vld', 'vst', 'dma'):
                        if pw & (rd | wr):
                            n = max(n, 12 if big else 8)
                        if x.cls == 'valu' and set(p.C) & wr:
                            n = max(n, 7 if big else 3)
                elif p.cls == 'salu':
                    if ('s', 'm0') in pw and x.cls == 'dma':
                        n = max(n, 1)
                elif p.cls == 'vst':
                    if len(p.data) >= 3 and set(p.data) & wr:
                        n = max(n, 2)
                if n > dist:
                    req = max(req, n - dist)
            if req > pad.get(i, 0):
                pad[i] = req
            pos += pad.get(i, 0)
            hist.append((x, pos))
            if len(hist) > 24:
                hist.pop(0)
            pos += x.n if x.cls == 'nop' else 1
        out = []
        self.npad = 0
        for i, x in enumerate(L):
            if i in pad:
                out.append(Ins(f's_nop {pad[i] - 1}'))
                self.npad += pad[i]
                self.notes.append(f'pad {pad[i]} before: {x.text}')
            out.append(x)
        self.L = out

    def finish(self):
        self._insert_waits()
        self._hazards()
        lines = []
        for x in self.L:
            if x.kind in ('lstart', 'lend', 'reset'):
                continue
            if x.kind in ('label', 'raw'):
                lines.append(x.text)
            else:
                lines.append('  ' + x.text)
        return '\n'.join(lines) + '\n'


def waitvm(tag):
    return Ins('', kind='waitvm', arg=tag)


def waitlds(tag):
    return Ins('', kind='waitlds', arg=tag)


def vr(base, n=1, k='v'):
    return f'{k}{base}' if n == 1 else f'{k}[{base}:{base + n - 1}]'


def ar(base, n=1):
    return vr(base, n, 'a')


def sr(base, n=1):
    return vr(base, n, 's')


def weave(a, mfmas, gaps, pre=None):
    for it in (pre or []):
        a.add(it)
    for i, m in enumerate(mfmas):
        a.add(m)
        for it in gaps.get(i, []) if isinstance(gaps, dict) else gaps[i]:
            a.add(it)
```

```python
import math, struct, sys
from asmlib import *

NAME = 'adaLN_cond__sliding_block_cached__dense_activation_silu__prompt'
KA = dict(x=0, k=8, v=16, wq=24, wo=32, w1=48, w2=56, c=64, wmod=72, out=80, dbg=88, ws=96)
SZ = dict(x=2097152, k=4194304, v=4194304, wq=4194304, wo=4194304, w1=1835008, w2=1835008, c=1024,
          wmod=3145728, out=2097152, dbg=256, ws=268435456)
WS_MOD, WS_P1, WS_H2, WS_X1, WS_HB = 0, 1 << 20, 20 << 20, 24 << 20, 32 << 20
LOG2E = 1.4426950408889634
QSCALE = LOG2E / math.sqrt(128.0)
LDS_W = 65536
WREG = 24576


def f2u(x):
    return '0x%08x' % struct.unpack('<I', struct.pack('<f', x))[0]


def srd(a, s, name):
    a(f's_load_dwordx2 {sr(s, 2)}, s[0:1], {KA[name]}')
    a(f's_mov_b32 s{s + 2}, {SZ[name]}')
    a(f's_mov_b32 s{s + 3}, 0x20000')


def kernel_begin(a, name, nwg):
    a.raw(f'.globl {name}\n.p2align 8\n.type {name},@function')
    a.label(name)
    a.reset()
    a(f's_cmp_ge_u32 s2, {nwg}')
    a(f's_cbranch_scc1 {name}_end')


def kernel_end(a, name):
    a.label(name + '_end')
    a('s_endpgm')


def descriptor(name, vgpr=512, acc=256):
    return f'''.p2align 6
.amdhsa_kernel {name}
  .amdhsa_next_free_vgpr {vgpr}
  .amdhsa_next_free_sgpr 102
  .amdhsa_accum_offset {acc}
  .amdhsa_group_segment_fixed_size 0
  .amdhsa_kernarg_size 104
  .amdhsa_user_sgpr_count 2
  .amdhsa_user_sgpr_kernarg_segment_ptr 1
  .amdhsa_system_sgpr_workgroup_id_x 1
.end_amdhsa_kernel
'''


def round_bf16(a, regs, tmp):
    for i in range(0, len(regs), 2):
        a(f'v_cvt_pk_bf16_f32 v{tmp}, v{regs[i]}, v{regs[i + 1]}')
        a(f'v_lshlrev_b32 v{regs[i]}, 16, v{tmp}')
        a(f'v_and_b32 v{regs[i + 1]}, 0xffff0000, v{tmp}')


def unpack8(a, dst, src):
    for i in range(4):
        a(f'v_lshlrev_b32 v{dst + 2 * i}, 16, v{src + i}')
        a(f'v_and_b32 v{dst + 2 * i + 1}, 0xffff0000, v{src + i}')


def row_allreduce(a, regs):
    for sh in (8, 4, 2, 1):
        for r in regs:
            a(f'v_add_f32_dpp v{r}, v{r}, v{r} row_ror:{sh} row_mask:0xf bank_mask:0xf')


def gen_mod(a):
    n = 'mod_kernel'
    kernel_begin(a, n, 256)
    srd(a, 4, 'c'); srd(a, 8, 'wmod'); srd(a, 12, 'ws')
    a('s_and_b32 s16, s2, 7\ns_lshr_b32 s17, s2, 3')
    a('s_lshl_b32 s18, s16, 7\ns_lshl_b32 s19, s17, 2\ns_add_u32 s18, s18, s19')
    a('s_lshl_b32 s20, s16, 8\ns_lshl_b32 s19, s17, 3\ns_add_u32 s20, s20, s19\ns_add_u32 s20, s20, 1024')
    a('s_lshl_b32 s21, s18, 1\ns_lshl_b32 s22, s20, 1')
    a('s_add_u32 s23, s21, 1572864\ns_add_u32 s24, s22, 1572864')
    a('v_mul_u32_u24 v1, 6144, v0\nv_lshlrev_b32 v2, 1, v0')
    a('s_waitcnt lgkmcnt(0)')
    a('buffer_load_ushort v4, v2, s[4:7], 0 offen\nbuffer_load_ushort v5, v2, s[4:7], 0 offen offset:512')
    a('buffer_load_dwordx2 v[8:9], v1, s[8:11], s21 offen\nbuffer_load_dwordx2 v[14:15], v1, s[8:11], s23 offen')
    a('buffer_load_dwordx4 v[10:13], v1, s[8:11], s22 offen\nbuffer_load_dwordx4 v[16:19], v1, s[8:11], s24 offen')
    for r in (4, 5):
        a(f'v_lshlrev_b32 v{r}, 16, v{r}')
        a(f'v_mul_f32 v{r + 2}, {f2u(-LOG2E)}, v{r}')
        a(f'v_exp_f32 v{r + 2}, v{r + 2}')
        a(f'v_add_f32 v{r + 2}, 1.0, v{r + 2}')
        a(f'v_rcp_f32 v{r + 2}, v{r + 2}')
        a(f'v_mul_f32 v{r}, v{r}, v{r + 2}')
    round_bf16(a, [4, 5], 6)
    for i in range(6):
        a(f'v_lshlrev_b32 v32, 16, v{8 + i}\nv_and_b32 v33, 0xffff0000, v{8 + i}')
        a(f'v_lshlrev_b32 v34, 16, v{14 + i}\nv_and_b32 v35, 0xffff0000, v{14 + i}')
        a(f'v_mul_f32 v{20 + 2 * i}, v4, v32\nv_mul_f32 v{21 + 2 * i}, v4, v33')
        a(f'v_fmac_f32 v{20 + 2 * i}, v5, v34\nv_fmac_f32 v{21 + 2 * i}, v5, v35')
    for q in range(3):
        b = 20 + 4 * q
        a(f'v_permlane32_swap_b32 v{b}, v{b + 2}\nv_permlane32_swap_b32 v{b + 1}, v{b + 3}')
    for q in range(3):
        b = 20 + 4 * q
        a(f'v_add_f32 v{b}, v{b}, v{b + 2}\nv_add_f32 v{b + 1}, v{b + 1}, v{b + 3}')
    for q in range(3):
        b = 20 + 4 * q
        a(f'v_permlane16_swap_b32 v{b}, v{b + 1}')
    for q in range(3):
        b = 20 + 4 * q
        a(f'v_add_f32 v{b}, v{b}, v{b + 1}')
    row_allreduce(a, [20, 24, 28])
    a('v_lshrrev_b32 v1, 4, v0\nv_lshlrev_b32 v1, 2, v1')
    a('ds_write_b32 v1, v20\nds_write_b32 v1, v24 offset:64\nds_write_b32 v1, v28 offset:128')
    a('s_waitcnt lgkmcnt(0)\ns_barrier')
    a('v_lshrrev_b32 v1, 2, v0\nv_lshlrev_b32 v1, 6, v1\nv_and_b32 v2, 3, v0\nv_lshl_add_u32 v1, v2, 2, v1')
    a('v_and_b32 v1, 0xff, v1')
    a('ds_read_b32 v4, v1\nds_read_b32 v5, v1 offset:16\nds_read_b32 v6, v1 offset:32\nds_read_b32 v7, v1 offset:48')
    a('v_add_f32 v4, v4, v5\nv_add_f32 v6, v6, v7\nv_add_f32 v4, v4, v6')
    a('v_cvt_pk_bf16_f32 v4, v4, v4\nv_and_b32 v4, 0xffff0000, v4')
    a('s_sub_u32 s19, s20, 4')
    a('v_add_u32 v1, s18, v0\nv_add_u32 v2, s19, v0\nv_cmp_gt_u32 vcc, 4, v0\nv_cndmask_b32 v1, v2, v1, vcc\nv_lshlrev_b32 v1, 2, v1')
    a('v_cmp_gt_u32 vcc, 12, v0\ns_and_saveexec_b64 s[26:27], vcc')
    a(f's_cbranch_execz {n}_end')
    a(f'buffer_store_dword v4, v1, s[12:15], 0 offen offset:{WS_MOD}')
    kernel_end(a, n)


V_LANE = 1
V_TA = 2
V_BA = 6
V_DW = 10
V_T = 14
S_WAVE = 3


def setup_common(a):
    a(f'v_lshrrev_b32 v{V_T}, 6, v0\nv_and_b32 v{V_LANE}, 63, v0')
    a(f'v_readfirstlane_b32 s{S_WAVE}, v{V_T}')


def setup_ta_ba(a, s_wbase):
    t = V_T
    l = V_LANE
    a(f'v_lshrrev_b32 v{t}, 4, v{l}')
    a(f'v_bfe_u32 v{t + 1}, v{l}, 2, 2')
    a(f'v_lshl_add_u32 v{t + 2}, v{t}, 3, v{t + 1}')
    a(f'v_lshlrev_b32 v{t + 2}, 7, v{t + 2}')
    a(f'v_and_b32 v{t + 3}, 3, v{l}')
    a(f'v_lshl_add_u32 v{t + 2}, v{t + 3}, 3, v{t + 2}')
    a(f'v_add_u32 v{t + 2}, s{s_wbase}, v{t + 2}')
    a(f'v_bfe_u32 v{t + 3}, v{l}, 3, 2')
    for d in range(4):
        a(f'v_xor_b32 v{t + 4}, {d}, v{t + 3}')
        a(f'v_lshl_add_u32 v{V_TA + d}, v{t + 4}, 5, v{t + 2}')
    a(f'v_and_b32 v{t + 1}, 15, v{l}')
    for k in range(4):
        a(f'v_add_u32 v{t + 2}, {4 * k}, v{t}')
        a(f'v_xor_b32 v{t + 2}, v{t + 2}, v{t + 1}')
        a(f'v_lshlrev_b32 v{t + 2}, 4, v{t + 2}')
        a(f'v_lshl_add_u32 v{V_BA + k}, v{t + 1}, 10, v{t + 2}')


def setup_dw(a, stride, dst=V_DW):
    t = V_T
    l = V_LANE
    a(f'v_lshrrev_b32 v{t}, 3, v{l}')
    a(f'v_mul_u32_u24 v{t}, {stride}, v{t}')
    a(f'v_and_b32 v{t + 1}, 1, v{l}')
    a(f'v_lshl_add_u32 v{t}, v{t + 1}, 4, v{t}')
    a(f'v_bfe_u32 v{t + 1}, v{l}, 1, 2')
    a(f'v_bfe_u32 v{t + 2}, v{l}, 4, 1')
    a(f'v_xor_b32 v{t + 1}, v{t + 1}, v{t + 2}')
    for i in range(4):
        a(f'v_xor_b32 v{t + 2}, {(i & 1) << 1}, v{t + 1}')
        a(f'v_lshl_add_u32 v{t + 2}, v{t + 2}, 5, v{t}')
        a(f'v_add_u32 v{dst + i}, {i * (8 * stride - 1024)}, v{t + 2}')


def w_dma(srd_s, s_off, s_base, const_off, stride, s_wbase, slot, tag, dw=V_DW):
    out = []
    for i in range(8):
        g = []
        if i % 4 == 0:
            g.append(f's_add_u32 m0, s{s_wbase}, {slot * 8192 + (i // 4) * 4096}')
            g.append(f's_add_u32 s{s_off}, s{s_base}, {const_off + 32 * (i // 4) * stride}')
        g.append((f'buffer_load_dwordx4 v{dw + i % 4}, {sr(srd_s, 4)}, s{s_off} offen offset:{(i % 4) * 1024} lds',
                  f'{tag}.{i // 4}'))
        out.append(g)
    return out


def a_reads(dst, slot, c, tag, k='a'):
    return [(f'ds_read_b64_tr_b16 {vr(dst + 8 * d + 4 * c + 2 * j, 2, k)}, v{V_TA + d} offset:{slot * 8192 + (32 * c + 4 * j) * 128}', f'{tag}.{c}')
            for d in range(4) for j in range(2)]


def b_read(dst, ks, qt, k='a'):
    return f'ds_read_b128 {vr(dst, 4, k)}, v{V_BA + (ks & 3)} offset:{qt * 16384 + (ks >> 2) * 256}'


def gemm_mfmas(acc, abuf, bbuf, first, ak='a', bk='a'):
    out = []
    for d in range(4):
        for q in range(4):
            qt = q if d % 2 == 0 else 3 - q
            for c in range(2):
                D = vr(acc + 16 * d + 4 * qt, 4)
                C = '0' if (first and c == 0) else D
                out.append(f'v_mfma_f32_16x16x32_bf16 {D}, {vr(abuf + 8 * d + 4 * c, 4, ak)}, {vr(bbuf + 16 * c + 4 * qt, 4, bk)}, {C}')
    return out


def place_step(dmas, reads, extra=None):
    gaps = [[] for _ in range(32)]
    dpos = [2 + 4 * i for i in range(len(dmas))]
    for g, p in zip(dmas, dpos):
        pre = g[:-1]
        for k, it in enumerate(pre):
            gaps[max(0, p - len(pre) + k)].append(it)
        gaps[p].append(g[-1])
    gi = 0
    for it in reads:
        if isinstance(it, Ins):
            while gi in dpos and gi < 31:
                gi += 1
            gaps[gi].append(it)
            continue
        while gi in dpos and gi < 31:
            gi += 1
        gaps[gi].append(it)
        gi = min(gi + 1, 31)
    for p, it in (extra or []):
        gaps[p].append(it)
    return gaps


def load_modvec(a, dst, srd_s, which, v_l32):
    a(f'buffer_load_dwordx4 {vr(dst, 4)}, v{v_l32}, {sr(srd_s, 4)}, 0 offen offset:{(which * 2048) % 4096}'
      if which < 2 else '')


def gen_attn(a):
    n = 'attn_kernel'
    kernel_begin(a, n, 256)
    SX, SWQ, SK, SV, SWO, SWS = 4, 8, 12, 16, 20, 24
    S_G, S_R, S_WB, S_OFF, S_BASE, S_KV, S_T = 28, 29, 30, 31, 32, 33, 34
    S_ST = 40
    srd(a, SX, 'x'); srd(a, SWQ, 'wq'); srd(a, SK, 'k'); srd(a, SV, 'v'); srd(a, SWO, 'wo'); srd(a, SWS, 'ws')
    setup_common(a)
    a(f's_and_b32 s{S_G}, s2, 7\ns_lshr_b32 s{S_R}, s2, 3')
    a(f's_mul_i32 s{S_WB}, s{S_WAVE}, {WREG}\ns_add_u32 s{S_WB}, s{S_WB}, {LDS_W}')
    setup_dw(a, 8192)
    a(f's_lshl_b32 s{S_BASE}, s{S_G}, 10\ns_lshl_b32 s{S_T}, s{S_WAVE}, 8\ns_add_u32 s{S_BASE}, s{S_BASE}, s{S_T}')
    a('s_waitcnt lgkmcnt(0)')
    XR = 20
    XF = 96
    MA, MS = 224, 232
    SS, SQ = 20, 36
    a(f'v_lshlrev_b32 v{V_T + 4}, 4, v{V_LANE}\nv_lshlrev_b32 v{V_T + 5}, 5, v{V_LANE}')
    a(f's_lshl_b32 s{S_T}, s{S_R}, 16\ns_lshl_b32 s{S_T + 1}, s{S_WAVE}, 14\ns_add_u32 s{S_T}, s{S_T}, s{S_T + 1}')
    for i in range(16):
        if i and i % 4 == 0:
            a(f's_add_u32 s{S_T}, s{S_T}, 4096')
        a(f'buffer_load_dwordx4 {vr(XR + 4 * i, 4)}, v{V_T + 4}, {sr(SX, 4)}, s{S_T} offen offset:{(i % 4) * 1024}')
    for k, (dst, off) in enumerate(((MS, 0), (MS + 4, 16), (MA, 2048), (MA + 4, 2064))):
        a(f'buffer_load_dwordx4 {vr(dst, 4)}, v{V_T + 5}, {sr(SWS, 4)}, 0 offen offset:{WS_MOD + off}')
    qslot = lambda t: (t + 2) % 3
    def q_dma(t):
        return w_dma(SWQ, S_OFF, S_BASE, (t >> 1) * 64 * 8192 + (t & 1) * 128, 8192, S_WB, qslot(t), f'wq{t}')
    for t in range(3):
        for g in q_dma(t):
            for it in g:
                a.add(it)
    a(f'v_mov_b32 v240, v{V_T + 4}')
    setup_ta_ba(a, S_WB)
    for i in range(16):
        unpack8(a, XF + 8 * i, XR + 4 * i)
    T0 = 84
    for i in range(16):
        b = XF + 8 * i
        a(f'v_pk_add_f32 {vr(T0, 2)}, {vr(b, 2)}, {vr(b + 2, 2)}')
        a(f'v_pk_mul_f32 {vr(T0 + 4, 2)}, {vr(b, 2)}, {vr(b, 2)}')
        a(f'v_pk_add_f32 {vr(T0 + 2, 2)}, {vr(b + 4, 2)}, {vr(b + 6, 2)}')
        a(f'v_pk_fma_f32 {vr(T0 + 4, 2)}, {vr(b + 2, 2)}, {vr(b + 2, 2)}, {vr(T0 + 4, 2)}')
        a(f'v_pk_add_f32 {vr(T0, 2)}, {vr(T0, 2)}, {vr(T0 + 2, 2)}')
        a(f'v_pk_fma_f32 {vr(T0 + 4, 2)}, {vr(b + 4, 2)}, {vr(b + 4, 2)}, {vr(T0 + 4, 2)}')
        a(f'v_add_f32 v{SS + i}, v{T0}, v{T0 + 1}')
        a(f'v_pk_fma_f32 {vr(T0 + 4, 2)}, {vr(b + 6, 2)}, {vr(b + 6, 2)}, {vr(T0 + 4, 2)}')
        a(f'v_add_f32 v{SQ + i}, v{T0 + 4}, v{T0 + 5}')
    for B in (SS, SQ):
        for i in range(8):
            a(f'v_permlane32_swap_b32 v{B + i}, v{B + i + 8}')
    for B in (SS, SQ):
        for i in range(8):
            a(f'v_add_f32 v{B + i}, v{B + i}, v{B + i + 8}')
    for B in (SS, SQ):
        for i in range(4):
            a(f'v_permlane16_swap_b32 v{B + i}, v{B + i + 4}')
    for B in (SS, SQ):
        for i in range(4):
            a(f'v_add_f32 v{B + i}, v{B + i}, v{B + i + 4}')
    row_allreduce(a, [SS + i for i in range(4)] + [SQ + i for i in range(4)])
    ln_stats(a, [SS + i for i in range(4)], [SQ + i for i in range(4)])
    for i in range(4):
        for row in range(4):
            rho = i + 4 * row
            a(f'v_readlane_b32 s{S_ST + 2 * rho}, v{SQ + i}, {16 * row}')
            a(f'v_readlane_b32 s{S_ST + 2 * rho + 1}, v{SS + i}, {16 * row}')
    for i in range(16):
        for p in range(4):
            b = XF + 8 * i + 2 * p
            s = sr(S_ST + 2 * i, 2)
            a(f'v_pk_fma_f32 {vr(b, 2)}, {vr(b, 2)}, {s}, {s} op_sel:[0,0,1] op_sel_hi:[1,0,1]')
    for i in range(8):
        a(f'v_add_f32 v{MA + i}, 1.0, v{MA + i}')
    round_bf16(a, [MA + i for i in range(8)], T0)
    for i in range(16):
        a(f'v_mul_f32 v{MA + i}, {f2u(QSCALE)}, v{MA + i}')
    a(f's_lshl_b32 s{S_T}, s{S_WAVE}, 14\nv_add_u32 v240, s{S_T}, v240')
    for i in range(16):
        b = XF + 8 * i
        for p in range(4):
            a(f'v_pk_fma_f32 {vr(b + 2 * p, 2)}, {vr(b + 2 * p, 2)}, {vr(MA + 2 * p, 2)}, {vr(MS + 2 * p, 2)}')
        d = XR + 4 * (i % 4)
        for p in range(4):
            a(f'v_cvt_pk_bf16_f32 v{d + p}, v{b + 2 * p}, v{b + 2 * p + 1}')
        a(f'v_xor_b32 v{T0 + i % 4}, {i << 4}, v240')
        a(f'ds_write_b128 v{T0 + i % 4}, {vr(d, 4)} offset:{i * 1024}')
    V_KA, V_VA, V_KD = 20, 28, 32
    V_L0, V_L1 = 36, 37
    V_TM = 38
    S0, S1, NM0, NM1, P0, P1 = 48, 64, 80, 96, 112, 120
    ACC = 128
    AB, BB = 0, 64
    QF, KF, VF = 128, 192, 224
    a('s_waitcnt lgkmcnt(0)')
    t, l = V_TM, V_LANE
    a(f'v_bfe_u32 v{t}, v{l}, 2, 2\nv_mul_u32_u24 v{t}, {WREG}, v{t}')
    a(f'v_bfe_u32 v{t + 1}, v{l}, 4, 1\nv_and_b32 v{t + 2}, 3, v{l}\nv_lshl_add_u32 v{t + 1}, v{t + 1}, 2, v{t + 2}')
    a(f'v_lshl_add_u32 v{t}, v{t + 1}, 8, v{t}\nv_add_u32 v{t}, {LDS_W}, v{t}')
    a(f'v_lshrrev_b32 v{t + 1}, 5, v{l}\nv_and_b32 v{t + 2}, 15, v{l}\nv_xor_b32 v{t + 1}, v{t + 1}, v{t + 2}')
    for ks in range(8):
        a(f'v_xor_b32 v{t + 2}, {2 * ks}, v{t + 1}\nv_lshl_add_u32 v{V_KA + ks}, v{t + 2}, 4, v{t}')
    a(f'v_lshrrev_b32 v{t}, 5, v{l}\nv_mul_u32_u24 v{t}, {WREG}, v{t}\nv_add_u32 v{t}, {LDS_W + 2048}, v{t}')
    a(f'v_bfe_u32 v{t + 1}, v{l}, 2, 2\nv_lshl_add_u32 v{t}, v{t + 1}, 8, v{t}')
    a(f'v_bfe_u32 v{t + 2}, v{l}, 4, 1\nv_lshl_add_u32 v{t}, v{t + 2}, 5, v{t}')
    a(f'v_and_b32 v{t + 2}, 1, v{l}\nv_lshl_add_u32 v{t}, v{t + 2}, 4, v{t}')
    a(f'v_bfe_u32 v{t + 2}, v{l}, 1, 1\nv_lshl_add_u32 v{t}, v{t + 2}, 3, v{t}')
    for d in range(4):
        a(f'v_xor_b32 v{t + 2}, {d}, v{t + 1}\nv_lshl_add_u32 v{V_VA + d}, v{t + 2}, 6, v{t}')
    a(f's_lshl_b32 s{S_T}, s{S_WAVE}, 2')
    a(f'v_lshrrev_b32 v{t}, 4, v{l}\nv_add_u32 v{t + 1}, s{S_T}, v{t}')
    a(f'v_and_b32 v{t + 2}, 15, v{l}\nv_xor_b32 v{t + 3}, v{t + 2}, v{t + 1}\nv_lshlrev_b32 v{t + 3}, 4, v{t + 3}')
    a(f'v_lshl_add_u32 v{t + 3}, v{t + 1}, 8, v{t + 3}')
    a(f'v_add_u32 v{V_KD}, {1536 * 256}, v{t + 3}\nv_add_u32 v{V_KD + 1}, {1536 * 256 + 3072}, v{t + 3}')
    a(f'v_lshlrev_b32 v{t}, 2, v{t}\nv_xor_b32 v{t + 3}, v{t + 2}, v{t}\nv_lshlrev_b32 v{t + 3}, 4, v{t + 3}')
    a(f'v_lshl_add_u32 v{t + 3}, v{t + 1}, 8, v{t + 3}')
    a(f'v_add_u32 v{V_KD + 2}, {1536 * 256 - 8192 - 2048}, v{t + 3}\nv_add_u32 v{V_KD + 3}, {1536 * 256 - 8192 + 1024}, v{t + 3}')
    a(f's_lshl_b32 s{S_KV}, s{S_G}, 19')

    def kv_dma(p):
        sg = (p + 1) & 3
        its = []
        if p < 15:
            its += [(f'buffer_load_dwordx4 v{V_KD + h}, {sr(SK, 4)}, s{S_OFF} offen offset:{1024 * h} lds', f'kv{p}') for h in range(2)]
        if p >= 0:
            its += [(f'buffer_load_dwordx4 v{V_KD + 2 + h}, {sr(SV, 4)}, s{S_OFF} offen offset:{2048 + 1024 * h} lds', f'kv{p}') for h in range(2)]
        out = [[it] for it in its]
        out[0] = [f's_add_u32 m0, s{S_WB}, {sg * 4096}', f's_add_u32 s{S_OFF}, s{S_KV}, {(p + 1) * 8192}'] + out[0]
        return out

    a('s_barrier')
    a.wait_vm('wq0.1')
    for it in a_reads(AB, qslot(0), 0, 'r0') + a_reads(AB, qslot(0), 1, 'r0'):
        a.add(it)
    for c in range(2):
        for qt in range(4):
            a(b_read(BB + 16 * c + 4 * qt, c, qt))
    for t in range(16):
        kb, half = t >> 1, t & 1
        mf = gemm_mfmas(ACC + 64 * half, AB + 32 * (t & 1), BB + 32 * (kb & 1), kb == 0)
        reads = []
        if t < 15:
            nb = AB + 32 * ((t + 1) & 1)
            reads += [waitvm(f'wq{t + 1}.0')] + a_reads(nb, qslot(t + 1), 0, f'r{t + 1}')
        if kb < 7:
            reads += [b_read(BB + 32 * ((kb + 1) & 1) + 16 * half + 4 * qt, 2 * (kb + 1) + half, qt) for qt in range(4)]
        if t < 15:
            reads += [waitvm(f'wq{t + 1}.1')] + a_reads(nb, qslot(t + 1), 1, f'r{t + 1}')
        if t + 3 < 16:
            dm = q_dma(t + 3)
        elif t == 13:
            dm = kv_dma(-1) + kv_dma(0)
        elif t == 14:
            dm = kv_dma(1) + kv_dma(2)
        else:
            dm = []
        if dm:
            dm[0] = [waitlds(f'r{t}.0')] + dm[0]
            k2 = 2 if t == 13 else 4
            dm[k2] = [waitlds(f'r{t}.1')] + dm[k2]
        weave(a, mf, place_step(dm, reads))
    setup_dw(a, 1024)
    for Q in range(2):
        for dt in range(8):
            x = ACC + 16 * dt + 8 * Q
            tm = V_TM + 4 * (dt & 1)
            a(f'v_cvt_pk_bf16_f32 v{tm}, v{x}, v{x + 1}\nv_cvt_pk_bf16_f32 v{tm + 2}, v{x + 4}, v{x + 5}')
            a(f'v_cvt_pk_bf16_f32 v{tm + 1}, v{x + 2}, v{x + 3}\nv_cvt_pk_bf16_f32 v{tm + 3}, v{x + 6}, v{x + 7}')
            a(f'v_permlane16_swap_b32 v{tm}, v{tm + 2}\nv_permlane16_swap_b32 v{tm + 1}, v{tm + 3}')
            for i in range(4):
                a(f'v_accvgpr_write_b32 a{QF + 32 * Q + 4 * dt + i}, v{tm + i}')
    a(f's_lshl_b32 s{S_BASE}, s{S_G}, 19\ns_lshl_b32 s{S_T}, s{S_WAVE}, 8\ns_add_u32 s{S_BASE}, s{S_BASE}, s{S_T}')
    oslot = lambda t: (2, 1, 0)[t % 3]
    def o_dma(t):
        return w_dma(SWO, S_OFF, S_BASE, (t & 7) * 64 * 1024 + (t >> 3) * 128, 1024, S_WB, oslot(t), f'wo{t}')

    def k_read(p, ks):
        return f'ds_read_b128 {ar(KF + 4 * ks, 4)}, v{V_KA + ks} offset:{((p + 1) & 3) * 4096}'

    def v_read(p, i, j):
        ts, dt = i >> 2, i & 3
        return f'ds_read_b64_tr_b16 {ar(VF + 4 * i + 2 * j, 2)}, v{V_VA + dt} offset:{j * 2 * WREG + ((p + 1) & 3) * 4096 + ts * 1024}'

    def qk(S, Q, NM):
        return [f'v_mfma_f32_32x32x16_bf16 {vr(S, 16)}, {ar(KF + 4 * ks, 4)}, {ar(QF + 32 * Q + 4 * ks, 4)}, '
                + ((vr(NM, 16) if NM is not None else '0') if ks == 0 else vr(S, 16)) for ks in range(8)]

    def pv(Q, P, first):
        out = []
        for i in range(8):
            ts, dt = i >> 2, i & 3
            D = vr(ACC + 64 * Q + 16 * dt, 16)
            out.append(f'v_mfma_f32_32x32x16_bf16 {D}, {ar(VF + 4 * i, 4)}, {vr(P + 4 * ts, 4)}, ' + ('0' if first and ts == 0 else D))
        return out

    def sm_items(S, P, Lr):
        sl = [[] for _ in range(17)]
        for i in range(16):
            sl[i].append(f'v_exp_f32 v{S + i}, v{S + i}')
            sl[i + 1].append(f'v_add_f32 v{Lr}, v{Lr}, v{S + i}')
            if i & 1:
                sl[i + 1].append(f'v_cvt_pk_bf16_f32 v{P + (i >> 1)}, v{S + i - 1}, v{S + i}')
        return sl

    def first_max(S, NM):
        its = [f'v_max3_f32 v{V_TM}, v{S}, v{S + 1}, v{S + 2}']
        for i in range(3, 15, 2):
            its.append(f'v_max3_f32 v{V_TM}, v{V_TM}, v{S + i}, v{S + i + 1}')
        its.append(f'v_max_f32 v{V_TM}, v{V_TM}, v{S + 15}')
        its.append(f'v_mov_b32 v{V_TM + 1}, v{V_TM}')
        its.append(f'v_permlane32_swap_b32 v{V_TM}, v{V_TM + 1}')
        its.append(f'v_max_f32 v{V_TM}, v{V_TM}, v{V_TM + 1}')
        its.append(f'v_sub_f32 v{NM}, 0, v{V_TM}')
        its += [f'v_add_f32 v{S + i}, v{S + i}, v{NM}' for i in range(16)]
        its += [f'v_mov_b32 v{NM + i}, v{NM}' for i in range(1, 16)]
        return its

    a.wait_vm('kv0')
    a('s_barrier')
    for ks in range(8):
        a(k_read(-1, ks))
    a(f'v_mov_b32 v{V_L0}, 0\nv_mov_b32 v{V_L1}, 0')
    g = [[v_read(0, i, 0), v_read(0, i, 1)] for i in range(8)]
    weave(a, qk(S0, 0, None), g)
    fm = first_max(S0, NM0)
    g = [[] for _ in range(8)]
    for i, it in enumerate(fm):
        g[min(7, 3 + i // 6)].append(it)
    weave(a, qk(S1, 1, None), g)
    for sl in sm_items(S0, P0, V_L0):
        for it in sl:
            a(it)
    for it in first_max(S1, NM1):
        a(it)
    sm1 = sm_items(S1, P1, V_L1)
    g = [[k_read(0, i)] for i in range(8)]
    for i in range(6):
        g[2 + i] += sm1[i]
    weave(a, pv(0, P0, True), g)
    carry = sm1[6:]
    for t in range(1, 16):
        mf = qk(S0, 0, NM0) + pv(1, P1, t == 1) + qk(S1, 1, NM1) + pv(0, P0, False)
        g = [[] for _ in range(32)]
        for i, sl in enumerate(carry):
            g[i] += sl
        if t + 2 <= 15:
            dm = kv_dma(t + 2) if t + 2 > 2 else []
        else:
            dm = []
        if t == 1:
            dm = []
        for i, d in enumerate(dm):
            if len(d) > 1:
                g[0] += d[:-1]
            g[1 + i + min(i, 2)].append(d[-1])
        g[7] += [waitvm(f'kv{t}'), 's_barrier']
        if t == 1:
            for i, d in enumerate(kv_dma(3)):
                g[8 + 2 * i] += d
        if t == 3:
            for i, d in enumerate(o_dma(0)):
                g[8 + 2 * i] += d
        if t == 15:
            for i, d in enumerate(o_dma(1)):
                g[8 + 2 * i] += d
        for i in range(8):
            g[8 + i].append(v_read(t, i, 0))
            g[16 + i].append(v_read(t, i, 1))
            if t < 15:
                g[24 + i].append(k_read(t, i))
        for i, sl in enumerate(sm_items(S0, P0, V_L0)):
            g[10 + i] += sl
        sm1 = sm_items(S1, P1, V_L1)
        for i in range(6):
            g[26 + i] += sm1[i]
        carry = sm1[6:]
        weave(a, mf, g)
    for sl in carry:
        for it in sl:
            a(it)
    for m in pv(1, P1, False):
        a(m)
    for Lr in (V_L0, V_L1):
        a(f'v_mov_b32 v{V_TM}, v{Lr}\nv_permlane32_swap_b32 v{Lr}, v{V_TM}\nv_add_f32 v{Lr}, v{Lr}, v{V_TM}')
    a(f'v_rcp_f32 v{S0}, v{V_L0}\nv_rcp_f32 v{S0 + 2}, v{V_L1}')
    t, l = V_TM, V_LANE
    a(f'v_lshrrev_b32 v{t}, 5, v{l}\nv_and_b32 v{t + 1}, 15, v{l}\nv_xor_b32 v{t}, v{t}, v{t + 1}\nv_lshlrev_b32 v{t}, 4, v{t}')
    a(f'v_and_b32 v{t + 1}, 31, v{l}\nv_lshl_add_u32 v{t}, v{t + 1}, 10, v{t}')
    a(f's_lshl_b32 s{S_T}, s{S_WAVE}, 8\nv_add_u32 v{t}, s{S_T}, v{t}')
    for u in range(8):
        a(f'v_xor_b32 v{S1 + u}, {(2 * u) << 4}, v{t}')
    for Q in range(2):
        for u in range(8):
            b = ACC + 64 * Q + 8 * u
            for p in range(4):
                a(f'v_pk_mul_f32 {vr(b + 2 * p, 2)}, {vr(b + 2 * p, 2)}, {vr(S0 + 2 * Q, 2)} op_sel_hi:[1,0]')
            d = NM0 + 4 * (u % 4)
            for p in range(4):
                a(f'v_cvt_pk_bf16_f32 v{d + p}, v{b + 2 * p}, v{b + 2 * p + 1}')
            a(f'ds_write_b128 v{S1 + u}, {vr(d, 4)} offset:{Q * 32768}')
    a.wait_vm('wo0.1')
    for it in a_reads(AB, oslot(0), 0, 'o0') + a_reads(AB, oslot(0), 1, 'o0'):
        a.add(it)
    a('s_waitcnt lgkmcnt(0)\ns_barrier')
    for c in range(2):
        for qt in range(4):
            a(b_read(BB + 16 * c + 4 * qt, c, qt))
    for gq in o_dma(2):
        for it in gq:
            a.add(it)
    V_SO = 20
    a(f'v_and_b32 v{t}, 15, v{l}\nv_lshlrev_b32 v{t}, 13, v{t}\nv_bfe_u32 v{t + 1}, v{l}, 4, 1\nv_lshl_add_u32 v{t}, v{t + 1}, 5, v{t}')
    a(f'v_lshrrev_b32 v{t + 1}, 5, v{l}\nv_lshl_add_u32 v{V_SO}, v{t + 1}, 4, v{t}')
    S_P = 36
    a(f's_lshl_b32 s{S_P}, s{S_R}, 19\ns_lshl_b32 s{S_T}, s{S_G}, 10\ns_add_u32 s{S_P}, s{S_P}, s{S_T}')
    a(f's_lshl_b32 s{S_T}, s{S_WAVE}, 8\ns_add_u32 s{S_P}, s{S_P}, s{S_T}\ns_add_u32 s{S_P}, s{S_P}, {WS_P1}')
    for q in range(1, 4):
        a(f's_add_u32 s{S_P + q}, s{S_P}, {q * 131072}')

    def o_unit(half, cp, qt, tm):
        x = ACC + 64 * half + 32 * cp + 4 * qt
        y = x + 16
        return [f'v_cvt_pk_bf16_f32 v{tm}, v{x}, v{x + 1}', f'v_cvt_pk_bf16_f32 v{tm + 2}, v{y}, v{y + 1}',
                f'v_cvt_pk_bf16_f32 v{tm + 1}, v{x + 2}, v{x + 3}', f'v_cvt_pk_bf16_f32 v{tm + 3}, v{y + 2}, v{y + 3}',
                f'v_permlane16_swap_b32 v{tm}, v{tm + 2}', f'v_permlane16_swap_b32 v{tm + 1}, v{tm + 3}',
                f'buffer_store_dwordx4 {vr(tm, 4)}, v{V_SO}, {sr(SWS, 4)}, s{S_P + qt} offen offset:{128 * half + 64 * cp}']

    for t in range(16):
        kb, half = t & 7, t >> 3
        mf = gemm_mfmas(ACC + 64 * half, AB + 32 * (t & 1), BB + 32 * (t & 1), kb == 0)
        reads = []
        if t < 15:
            nb = AB + 32 * ((t + 1) & 1)
            bb = BB + 32 * ((t + 1) & 1)
            k1 = (t + 1) & 7
            reads += [waitvm(f'wo{t + 1}.0')] + a_reads(nb, oslot(t + 1), 0, f'o{t + 1}')
            reads += [b_read(bb + 16 * c + 4 * qt, 2 * k1 + c, qt) for qt in range(4) for c in range(2)]
            reads += [waitvm(f'wo{t + 1}.1')] + a_reads(nb, oslot(t + 1), 1, f'o{t + 1}')
        dm = o_dma(t + 3) if t + 3 < 16 else []
        if dm:
            dm[0] = [waitlds(f'o{t}.0')] + dm[0]
            dm[4] = [waitlds(f'o{t}.1')] + dm[4]
        extra = []
        if 8 <= t < 12:
            for u in range(2):
                idx = 2 * (t - 8) + u
                its = o_unit(0, idx >> 2, idx & 3, S0 + 4 * idx)
                for k, it in enumerate(its):
                    extra.append((3 + 14 * u + 2 * k, it))
        weave(a, mf, place_step(dm, reads, extra))
    for idx in range(8):
        for it in o_unit(1, idx >> 2, idx & 3, S0 + 4 * idx):
            a(it)
    kernel_end(a, n)


def ln_stats(a, S, Q):
    for s in S:
        a(f'v_mul_f32 v{s}, {f2u(1.0 / 512)}, v{s}')
    for q in Q:
        a(f'v_mul_f32 v{q}, {f2u(1.0 / 512)}, v{q}')
    for s, q in zip(S, Q):
        a(f'v_fma_f32 v{q}, -v{s}, v{s}, v{q}')
    for q in Q:
        a(f'v_max_f32 v{q}, 0, v{q}')
    for q in Q:
        a(f'v_add_f32 v{q}, {f2u(1e-5)}, v{q}')
    for q in Q:
        a(f'v_rsq_f32 v{q}, v{q}')
    for s, q in zip(S, Q):
        a(f'v_mul_f32 v{s}, -v{s}, v{q}'.replace('v_mul_f32', 'v_mul_f32_e64'))


def ffn_role(a, s_r, s_s):
    a(f's_and_b32 s{s_r}, s2, 7\ns_lshl_b32 s{s_r}, s{s_r}, 2\ns_lshr_b32 s{s_s}, s2, 6\ns_add_u32 s{s_r}, s{s_r}, s{s_s}')
    a(f's_lshr_b32 s{s_s}, s2, 3\ns_and_b32 s{s_s}, s{s_s}, 7')


def gen_red(a):
    n = 'red_kernel'
    kernel_begin(a, n, 256)
    SX, SWS = 4, 8
    S_R, S_S, S_ROW, S_T = 12, 13, 14, 15
    srd(a, SX, 'x'); srd(a, SWS, 'ws')
    setup_common(a)
    ffn_role(a, S_R, S_S)
    a(f's_lshl_b32 s{S_ROW}, s{S_R}, 6\ns_lshl_b32 s{S_T}, s{S_S}, 3\ns_add_u32 s{S_ROW}, s{S_ROW}, s{S_T}')
    a(f's_lshl_b32 s{S_T}, s{S_WAVE}, 1\ns_add_u32 s{S_ROW}, s{S_ROW}, s{S_T}')
    a(f'v_lshlrev_b32 v2, 4, v{V_LANE}\nv_lshlrev_b32 v3, 5, v{V_LANE}')
    a(f's_lshl_b32 s16, s{S_ROW}, 13\ns_add_u32 s16, s16, {WS_P1}\ns_lshl_b32 s17, s{S_ROW}, 10')
    a('s_waitcnt lgkmcnt(0)')
    PR, XR, GA, CB, SB, AC, T0 = 20, 84, 92, 100, 108, 116, 132
    for i in range(16):
        if i and i % 4 == 0:
            a('s_add_u32 s16, s16, 4096')
        a(f'buffer_load_dwordx4 {vr(PR + 4 * i, 4)}, v2, {sr(SWS, 4)}, s16 offen offset:{(i % 4) * 1024}')
    for i in range(2):
        a(f'buffer_load_dwordx4 {vr(XR + 4 * i, 4)}, v2, {sr(SX, 4)}, s17 offen offset:{i * 1024}')
    for dst, which in ((GA, 2), (SB, 3), (CB, 4)):
        a(f's_mov_b32 s18, {WS_MOD + which * 2048}')
        for h in range(2):
            a(f'buffer_load_dwordx4 {vr(dst + 4 * h, 4)}, v3, {sr(SWS, 4)}, s18 offen offset:{16 * h}')
    for r in range(2):
        for g in range(8):
            src = PR + 32 * r + 4 * g
            if g == 0:
                unpack8(a, AC + 8 * r, src)
            else:
                unpack8(a, T0, src)
                for p in range(4):
                    a(f'v_pk_add_f32 {vr(AC + 8 * r + 2 * p, 2)}, {vr(AC + 8 * r + 2 * p, 2)}, {vr(T0 + 2 * p, 2)}')
    for i in range(8):
        a(f'v_add_f32 v{CB + i}, 1.0, v{CB + i}')
    round_bf16(a, [CB + i for i in range(8)], T0)
    for i in range(16):
        a(f'v_mul_f32 v{CB + i}, {f2u(LOG2E)}, v{CB + i}')
    a(f's_add_u32 s18, s17, {WS_X1}\ns_add_u32 s19, s17, {WS_H2}')
    SS, SQ = 140, 142
    for r in range(2):
        b = AC + 8 * r
        unpack8(a, T0, XR + 4 * r)
        for p in range(4):
            a(f'v_pk_fma_f32 {vr(b + 2 * p, 2)}, {vr(b + 2 * p, 2)}, {vr(GA + 2 * p, 2)}, {vr(T0 + 2 * p, 2)}')
        d = PR + 4 * r
        for p in range(4):
            a(f'v_cvt_pk_bf16_f32 v{d + p}, v{b + 2 * p}, v{b + 2 * p + 1}')
        a(f'buffer_store_dwordx4 {vr(d, 4)}, v2, {sr(SWS, 4)}, s18 offen offset:{r * 1024}')
        unpack8(a, b, d)
        a(f'v_pk_add_f32 {vr(T0, 2)}, {vr(b, 2)}, {vr(b + 2, 2)}')
        a(f'v_pk_mul_f32 {vr(T0 + 4, 2)}, {vr(b, 2)}, {vr(b, 2)}')
        a(f'v_pk_add_f32 {vr(T0 + 2, 2)}, {vr(b + 4, 2)}, {vr(b + 6, 2)}')
        a(f'v_pk_fma_f32 {vr(T0 + 4, 2)}, {vr(b + 2, 2)}, {vr(b + 2, 2)}, {vr(T0 + 4, 2)}')
        a(f'v_pk_add_f32 {vr(T0, 2)}, {vr(T0, 2)}, {vr(T0 + 2, 2)}')
        a(f'v_pk_fma_f32 {vr(T0 + 4, 2)}, {vr(b + 4, 2)}, {vr(b + 4, 2)}, {vr(T0 + 4, 2)}')
        a(f'v_add_f32 v{SS + r}, v{T0}, v{T0 + 1}')
        a(f'v_pk_fma_f32 {vr(T0 + 4, 2)}, {vr(b + 6, 2)}, {vr(b + 6, 2)}, {vr(T0 + 4, 2)}')
        a(f'v_add_f32 v{SQ + r}, v{T0 + 4}, v{T0 + 5}')
    a(f'v_permlane32_swap_b32 v{SS}, v{SS + 1}\nv_permlane32_swap_b32 v{SQ}, v{SQ + 1}')
    a(f'v_add_f32 v{SS}, v{SS}, v{SS + 1}\nv_add_f32 v{SQ}, v{SQ}, v{SQ + 1}')
    a(f'v_mov_b32 v{SS + 1}, v{SS}\nv_mov_b32 v{SQ + 1}, v{SQ}')
    a(f'v_permlane16_swap_b32 v{SS}, v{SS + 1}\nv_permlane16_swap_b32 v{SQ}, v{SQ + 1}')
    a(f'v_add_f32 v{SS}, v{SS}, v{SS + 1}\nv_add_f32 v{SQ}, v{SQ}, v{SQ + 1}')
    row_allreduce(a, [SS, SQ])
    ln_stats(a, [SS], [SQ])
    for r in range(2):
        a(f'v_readlane_b32 s{20 + 2 * r}, v{SQ}, {32 * r}\nv_readlane_b32 s{21 + 2 * r}, v{SS}, {32 * r}')
    for r in range(2):
        b = AC + 8 * r
        s = sr(20 + 2 * r, 2)
        for p in range(4):
            a(f'v_pk_fma_f32 {vr(b + 2 * p, 2)}, {vr(b + 2 * p, 2)}, {s}, {s} op_sel:[0,0,1] op_sel_hi:[1,0,1]')
        for p in range(4):
            a(f'v_pk_fma_f32 {vr(b + 2 * p, 2)}, {vr(b + 2 * p, 2)}, {vr(CB + 2 * p, 2)}, {vr(SB + 2 * p, 2)}')
        d = PR + 8 + 4 * r
        for p in range(4):
            a(f'v_cvt_pk_bf16_f32 v{d + p}, v{b + 2 * p}, v{b + 2 * p + 1}')
        a(f'buffer_store_dwordx4 {vr(d, 4)}, v2, {sr(SWS, 4)}, s19 offen offset:{r * 1024}')
    kernel_end(a, n)


def gen_ffn1(a):
    n = 'ffn1_kernel'
    kernel_begin(a, n, 256)
    SW, SWS = 4, 8
    S_R, S_S, S_WB, S_OFF, S_BASE, S_T = 12, 13, 14, 15, 16, 17
    srd(a, SW, 'w1'); srd(a, SWS, 'ws')
    setup_common(a)
    ffn_role(a, S_R, S_S)
    a(f's_cmp_eq_u32 s{S_S}, 7\ns_cbranch_scc1 {n}_end')
    a(f's_mul_i32 s{S_WB}, s{S_WAVE}, {WREG}\ns_add_u32 s{S_WB}, s{S_WB}, {LDS_W}')
    setup_dw(a, 3584)
    setup_ta_ba(a, S_WB)
    a(f's_lshl_b32 s{S_BASE}, s{S_S}, 9\ns_lshl_b32 s{S_T}, s{S_WAVE}, 7\ns_add_u32 s{S_BASE}, s{S_BASE}, s{S_T}')
    a('s_waitcnt lgkmcnt(0)')
    a(f's_lshl_b32 s{S_T}, s{S_R}, 16\ns_lshl_b32 s{S_T + 1}, s{S_WAVE}, 14\ns_add_u32 s{S_T}, s{S_T}, s{S_T + 1}\ns_add_u32 s{S_T}, s{S_T}, {WS_H2}')
    a(f'v_lshlrev_b32 v{V_T}, 4, v{V_LANE}')
    for i in range(16):
        if i % 4 == 0:
            a(f's_add_u32 m0, s{S_T + 1}, {i * 1024}')
            if i:
                a(f's_add_u32 s{S_T}, s{S_T}, 4096')
        a(f'v_xor_b32 v{V_T + 1}, {i << 4}, v{V_T}')
        a(f'buffer_load_dwordx4 v{V_T + 1}, {sr(SWS, 4)}, s{S_T} offen offset:{(i % 4) * 1024} lds', tag='h2')
    dma = lambda kb: w_dma(SW, S_OFF, S_BASE, kb * 64 * 3584, 3584, S_WB, kb % 3, f'w{kb}')
    for kb in range(3):
        for g in dma(kb):
            for it in g:
                a.add(it)
    for kb in range(8):
        a.wait_vm(f'w{kb}.1')
        for it in a_reads(32 * kb, kb % 3, 0, f'r{kb}') + a_reads(32 * kb, kb % 3, 1, f'r{kb}'):
            a.add(it)
        if kb + 3 < 8:
            a.wait_lds(f'r{kb}.1')
            for g in dma(kb + 3):
                for it in g:
                    a.add(it)
    a('s_waitcnt vmcnt(0)\ns_barrier')
    ACC, BB, TM, V_SO = 32, 96, 224, 20
    t, l = V_T, V_LANE
    a(f'v_and_b32 v{t}, 15, v{l}\nv_lshlrev_b32 v{t}, 4, v{t}\nv_bfe_u32 v{t + 1}, v{l}, 4, 1\nv_lshl_add_u32 v{t}, v{t + 1}, 9, v{t}')
    a(f'v_lshrrev_b32 v{t + 1}, 5, v{l}\nv_lshl_add_u32 v{V_SO}, v{t + 1}, 8, v{t}')
    a(f's_mul_i32 s{S_T}, s{S_R}, 28\ns_lshl_b32 s{S_T + 1}, s{S_S}, 2\ns_add_u32 s{S_T}, s{S_T}, s{S_T + 1}\ns_add_u32 s{S_T}, s{S_T}, s{S_WAVE}')
    a(f's_lshl_b32 s{S_T}, s{S_T}, 13\ns_add_u32 s{S_T}, s{S_T}, {WS_HB}\ns_add_u32 s{S_T + 1}, s{S_T}, 4096')

    def epi(qt):
        its = []
        for cp in range(2):
            x = ACC + 16 * qt + 8 * cp
            e = TM + 8 * cp
            its += [f'v_exp_f32_e64 v{e + i}, -v{x + i}' for i in range(8)]
            its += [f'v_add_f32 v{e + i}, 1.0, v{e + i}' for i in range(8)]
            its += [f'v_rcp_f32 v{e + i}, v{e + i}' for i in range(8)]
            its += [f'v_mul_f32 v{e + i}, v{e + i}, v{x + i}' for i in range(8)]
            tm = TM + 16 + 4 * cp
            its += [f'v_cvt_pk_bf16_f32 v{tm}, v{e}, v{e + 1}', f'v_cvt_pk_bf16_f32 v{tm + 2}, v{e + 4}, v{e + 5}',
                    f'v_cvt_pk_bf16_f32 v{tm + 1}, v{e + 2}, v{e + 3}', f'v_cvt_pk_bf16_f32 v{tm + 3}, v{e + 6}, v{e + 7}',
                    f'v_permlane16_swap_b32 v{tm}, v{tm + 2}', f'v_permlane16_swap_b32 v{tm + 1}, v{tm + 3}',
                    f'buffer_store_dwordx4 {vr(tm, 4)}, v{V_SO}, {sr(SWS, 4)}, s{S_T + cp} offen offset:{qt * 1024}']
        return its

    for ks in range(16):
        a(b_read(BB + 4 * ks, ks, 0, 'v'))
    for qt in range(4):
        bcur = BB + 64 * (qt & 1)
        mf = []
        for kq in range(4):
            for d in range(4):
                for k4 in range(4):
                    ks = 4 * kq + k4
                    D = vr(ACC + 16 * qt + 4 * d, 4)
                    mf.append(f'v_mfma_f32_16x16x32_bf16 {D}, {ar(32 * (ks >> 1) + 8 * d + 4 * (ks & 1), 4)}, {vr(bcur + 4 * ks, 4)}, '
                              + ('0' if ks == 0 else D))
        g = [[] for _ in range(64)]
        if qt < 3:
            for ks in range(16):
                g[4 * ks].append(b_read(BB + 64 * ((qt + 1) & 1) + 4 * ks, ks, qt + 1, 'v'))
        if qt > 0:
            its = epi(qt - 1)
            gi = 5
            load = 0
            for it in its:
                c = 2 if ('exp' in it or 'rcp' in it) else 1
                have = load + (1 if gi % 4 == 0 and qt < 3 else 0)
                if have + c > 2 and gi < 63:
                    gi += 1
                    load = 0
                    if c == 2 and gi % 4 == 0 and qt < 3 and gi < 63:
                        gi += 1
                g[gi].append(it)
                load += c
        weave(a, mf, g)
    for it in epi(3):
        a(it)
    kernel_end(a, n)


def gen_ffn2(a):
    n = 'ffn2_kernel'
    kernel_begin(a, n, 256)
    SW, SWS, SO = 4, 8, 12
    S_R, S_S, S_WB, S_OFF, S_BASE, S_T, S_H = 16, 17, 18, 19, 20, 21, 24
    srd(a, SW, 'w2'); srd(a, SWS, 'ws'); srd(a, SO, 'out')
    setup_common(a)
    ffn_role(a, S_R, S_S)
    a(f's_mul_i32 s{S_WB}, s{S_WAVE}, {WREG}\ns_add_u32 s{S_WB}, s{S_WB}, {LDS_W}')
    setup_dw(a, 1024)
    setup_ta_ba(a, S_WB)
    a(f's_lshl_b32 s{S_BASE}, s{S_S}, 7\ns_lshl_b32 s{S_T}, s{S_WAVE}, 16\ns_add_u32 s{S_BASE}, s{S_BASE}, s{S_T}')
    a(f's_mul_i32 s{S_H}, s{S_R}, 28\ns_add_u32 s{S_H}, s{S_H}, s{S_WAVE}\ns_lshl_b32 s{S_H}, s{S_H}, 13\ns_add_u32 s{S_H}, s{S_H}, {WS_HB}')
    V_L16 = 20
    a(f'v_lshlrev_b32 v{V_L16}, 4, v{V_LANE}')
    a('s_waitcnt lgkmcnt(0)')
    ACC, BB, X1, GB = 32, 96, 224, 232
    dma = lambda i: w_dma(SW, S_OFF, S_BASE, i * 4 * 64 * 1024, 1024, S_WB, i % 3, f'w{i}')

    def h_loads(i):
        out = []
        for c in range(2):
            for qt in range(4):
                g = []
                if qt == 0:
                    g.append(f's_add_u32 s{S_T}, s{S_H}, {i * 32768 + c * 4096}')
                g.append(f'buffer_load_dwordx4 {vr(BB + 32 * (i % 4) + 16 * c + 4 * qt, 4)}, v{V_L16}, {sr(SWS, 4)}, s{S_T} offen offset:{qt * 1024}')
                out.append(g)
        return out

    for i in range(3):
        for g in dma(i):
            for it in g:
                a.add(it)
    for i in range(7):
        a.wait_vm(f'w{i}.1')
        for it in a_reads(32 * i, i % 3, 0, f'r{i}') + a_reads(32 * i, i % 3, 1, f'r{i}'):
            a.add(it)
        if i + 3 < 7:
            a.wait_lds(f'r{i}.1')
            for g in dma(i + 3):
                for it in g:
                    a.add(it)
    for i in range(3):
        for g in h_loads(i):
            for it in g:
                a.add(it)
    t, l = V_T, V_LANE
    a(f'v_and_b32 v{t}, 15, v{l}\nv_lshlrev_b32 v{t}, 10, v{t}\nv_lshrrev_b32 v{t + 1}, 4, v{l}\nv_lshl_add_u32 v{t + 2}, v{t + 1}, 3, v{t}')
    a(f'v_lshlrev_b32 v{t + 3}, 4, v{t + 1}')
    a(f's_lshl_b32 s25, s{S_R}, 16\ns_lshl_b32 s26, s{S_WAVE}, 14\ns_add_u32 s25, s25, s26\ns_lshl_b32 s26, s{S_S}, 7\ns_add_u32 s25, s25, s26')
    a(f's_add_u32 s26, s25, {WS_X1}\ns_lshl_b32 s27, s{S_S}, 8\ns_add_u32 s27, s27, {WS_MOD + 5 * 2048}')
    for ct in range(4):
        a(f'buffer_load_dwordx2 {vr(X1 + 2 * ct, 2)}, v{t + 2}, {sr(SWS, 4)}, s26 offen offset:{32 * ct}')
    for ct in range(4):
        a(f'buffer_load_dwordx4 {vr(GB + 4 * ct, 4)}, v{t + 3}, {sr(SWS, 4)}, s27 offen offset:{64 * ct}')
    V_SO = 21
    a(f'v_bfe_u32 v{t + 1}, v{l}, 4, 1\nv_lshl_add_u32 v{t}, v{t + 1}, 5, v{t}\nv_lshrrev_b32 v{t + 1}, 5, v{l}\nv_lshl_add_u32 v{V_SO}, v{t + 1}, 4, v{t}')
    for i in range(7):
        mf = gemm_mfmas(ACC, 32 * i, BB + 32 * (i % 4), i == 0, 'a', 'v')
        dm = h_loads(i + 3) if i + 3 < 7 else []
        weave(a, mf, place_step(dm, []))
    a(f's_lshl_b32 s{S_T}, s{S_WAVE}, 14\nv_add_u32 v{t}, s{S_T}, v{V_L16}')
    a(f's_lshl_b32 s{S_T}, s{S_WAVE}, 12\nv_add_u32 v{t + 1}, s{S_T}, v{V_L16}')
    for qt in range(4):
        for ct in range(4):
            a(f'ds_write_b128 v{t}, {vr(ACC + 16 * ct + 4 * qt, 4)} offset:{qt * 4096 + ct * 1024}')
    a('s_waitcnt lgkmcnt(0)\ns_barrier')
    for w in range(4):
        for ct in range(4):
            a(f'ds_read_b128 {vr(BB + 16 * w + 4 * ct, 4)}, v{t + 1} offset:{w * 16384 + ct * 1024}')
    for i in range(16):
        a(f'v_mul_f32 v{GB + i}, {f2u(1.0 / LOG2E)}, v{GB + i}')
    for ct in range(4):
        for p in range(2):
            r = X1 + 2 * ct + p
            a(f'v_lshlrev_b32 v{ACC + 4 * ct + 2 * p}, 16, v{r}\nv_and_b32 v{ACC + 4 * ct + 2 * p + 1}, 0xffff0000, v{r}')
    for p in range(8):
        b = BB + 2 * p
        a(f'v_pk_add_f32 {vr(b, 2)}, {vr(b, 2)}, {vr(b + 16, 2)}')
        a(f'v_pk_add_f32 {vr(b + 32, 2)}, {vr(b + 32, 2)}, {vr(b + 48, 2)}')
    for p in range(8):
        b = BB + 2 * p
        a(f'v_pk_add_f32 {vr(b, 2)}, {vr(b, 2)}, {vr(b + 32, 2)}')
    for p in range(8):
        b = BB + 2 * p
        a(f'v_pk_fma_f32 {vr(b, 2)}, {vr(b, 2)}, {vr(GB + 2 * p, 2)}, {vr(ACC + 2 * p, 2)}')
    for cp in range(2):
        x = BB + 8 * cp
        tm = ACC + 32 + 4 * cp
        a(f'v_cvt_pk_bf16_f32 v{tm}, v{x}, v{x + 1}\nv_cvt_pk_bf16_f32 v{tm + 2}, v{x + 4}, v{x + 5}')
        a(f'v_cvt_pk_bf16_f32 v{tm + 1}, v{x + 2}, v{x + 3}\nv_cvt_pk_bf16_f32 v{tm + 3}, v{x + 6}, v{x + 7}')
        a(f'v_permlane16_swap_b32 v{tm}, v{tm + 2}\nv_permlane16_swap_b32 v{tm + 1}, v{tm + 3}')
        a(f'buffer_store_dwordx4 {vr(tm, 4)}, v{V_SO}, {sr(SO, 4)}, s25 offen offset:{64 * cp}')
    kernel_end(a, n)


def build(extra_empty=0):
    a = Asm()
    gen_mod(a); gen_attn(a); gen_red(a); gen_ffn1(a); gen_ffn2(a)
    if extra_empty:
        kernel_begin(a, 'empty_kernel', 0)
        kernel_end(a, 'empty_kernel')
    body = a.finish()
    L = 160 * 1024
    hdr = [f'; @launch kernel=mod_kernel grid=(256,1,1) block=(256,1,1) lds=1024',
           f'; @launch kernel=attn_kernel grid=(256,1,1) block=(256,1,1) lds={L}',
           f'; @launch kernel=red_kernel grid=(256,1,1) block=(256,1,1) lds=0',
           f'; @launch kernel=ffn1_kernel grid=(256,1,1) block=(256,1,1) lds={L}',
           f'; @launch kernel=ffn2_kernel grid=(256,1,1) block=(256,1,1) lds={L}']
    hdr += ['; @launch kernel=empty_kernel grid=(256,1,1) block=(256,1,1) lds=0'] * extra_empty
    txt = '\n'.join(hdr) + '\n.amdgcn_target "amdgcn-amd-amdhsa--gfx950"\n.text\n' + body + '.section .rodata,"a"\n'
    for k in ('mod_kernel', 'attn_kernel', 'red_kernel', 'ffn1_kernel', 'ffn2_kernel') + (('empty_kernel',) if extra_empty else ()):
        txt += descriptor(k)
    return txt, a


if __name__ == '__main__':
    out = sys.argv[1] if len(sys.argv) > 1 else f'cdna_kernels/{NAME}.s'
    txt, a = build(int(sys.argv[2]) if len(sys.argv) > 2 else 0)
    open(out, 'w').write(txt)
    print('instructions:', sum(1 for x in a.L if x.kind is None), 'pads:', a.npad, 'bytes of text:', len(txt))
    for nline in a.notes[:400]:
        print('  ', nline)
```

```python
import re

_REG = re.compile(r'^(-?)(abs\()?([vas])(?:(\d+)|\[(\d+):(\d+)\])\)?$')


def regs_of(op):
    op = op.strip()
    if op == 'vcc':
        return [('s', 'vcc')]
    if op == 'exec':
        return [('s', 'exec')]
    if op == 'm0':
        return [('s', 'm0')]
    m = _REG.match(op)
    if not m:
        return []
    k = m.group(3)
    if m.group(4) is not None:
        return [(k, int(m.group(4)))]
    return [(k, i) for i in range(int(m.group(5)), int(m.group(6)) + 1)]


TRANS = ('v_exp_f32', 'v_log_f32', 'v_rcp_f32', 'v_rsq_f32', 'v_sqrt_f32', 'v_sin_f32', 'v_cos_f32')


class Ins:
    def __init__(self, text, tag=None, kind=None, arg=None):
        self.text = text
        self.tag = tag
        self.kind = kind
        self.arg = arg
        self.rd = []
        self.wr = []
        self.cls = None
        if kind is None:
            self._parse()

    def _parse(self):
        t = self.text.split(';')[0].strip()
        sp = t.split(None, 1)
        self.mn = mn = sp[0]
        rest = sp[1] if len(sp) > 1 else ''
        parts = [p.strip() for p in re.split(r',(?![^\[]*\])', rest)] if rest else []
        mods = ''
        if parts:
            last = parts[-1].split()
            parts[-1] = last[0]
            mods = ' '.join(last[1:])
        self.ops = parts
        self.mods = mods
        R = [regs_of(p) for p in parts]
        flat = lambda xs: [r for x in xs for r in x]
        if mn.startswith('v_mfma'):
            self.cls = 'mfma'
            self.wr = R[0]
            self.A, self.B, self.C = R[1], R[2], R[3]
            self.rd = flat(R[1:])
            self.passes = 8 if '32x32x16' in mn else 4
        elif mn.startswith('ds_read') or mn.startswith('ds_bpermute') or mn.startswith('ds_swizzle'):
            self.cls = 'dsr'
            self.wr = R[0]
            self.rd = flat(R[1:])
        elif mn.startswith('ds_write'):
            self.cls = 'dsw'
            self.rd = flat(R)
        elif mn.startswith('buffer_load') or mn.startswith('global_load'):
            if 'lds' in mods.split() or 'lds' in mn:
                self.cls = 'dma'
                self.rd = flat(R) + [('s', 'm0')]
            else:
                self.cls = 'vld'
                self.wr = R[0]
                self.rd = flat(R[1:])
        elif mn.startswith('buffer_store') or mn.startswith('global_store'):
            self.cls = 'vst'
            self.rd = flat(R)
            self.data = R[0] if mn.startswith('buffer') else R[1]
        elif mn.startswith('buffer_atomic') or mn.startswith('global_atomic'):
            self.cls = 'vst'
            self.rd = flat(R)
            self.data = []
            if 'sc0' in mods.split():
                self.cls = 'vld'
                self.wr = R[0]
        elif mn in ('buffer_wbl2', 'buffer_inv'):
            self.cls = 'vst'
            self.data = []
        elif mn.startswith('s_load') or mn.startswith('s_memtime') or mn.startswith('s_memrealtime'):
            self.cls = 'smem'
            self.wr = R[0]
            self.rd = flat(R[1:])
        elif mn == 's_waitcnt':
            self.cls = 'wait'
            full = rest
            m = re.search(r'vmcnt\((\d+)\)', full)
            self.vm = int(m.group(1)) if m else None
            m = re.search(r'lgkmcnt\((\d+)\)', full)
            self.lg = int(m.group(1)) if m else None
        elif mn == 's_nop':
            self.cls = 'nop'
            self.n = int(parts[0]) + 1
        elif mn.startswith('s_'):
            self.cls = 'salu'
            if mn.startswith('s_cmp') or mn.startswith('s_cbranch') or mn.startswith('s_bitcmp') or mn in (
                    's_branch', 's_barrier', 's_endpgm', 's_setprio', 's_sleep', 's_setpc_b64'):
                self.rd = flat(R)
            else:
                self.wr = R[0] if R else []
                self.rd = flat(R[1:])
                if 'saveexec' in mn:
                    self.wr = self.wr + [('s', 'exec')]
        elif mn.startswith('v_'):
            self.cls = 'valu'
            self.wr = R[0]
            self.rd = flat(R[1:])
            if mn.startswith('v_permlane'):
                self.wr = R[0] + R[1]
                self.rd = R[0] + R[1]
            elif mn.startswith('v_fmac') or mn.startswith('v_dot2c') or 'dpp' in mn or mn.startswith('v_writelane'):
                self.rd = self.rd + R[0]
            elif mn.startswith('v_add_co') or mn.startswith('v_addc_co') or mn.startswith('v_sub_co'):
                self.wr = R[0] + R[1]
                self.rd = flat(R[2:])
            self.trans = any(mn.startswith(x) for x in TRANS)
            self.dpp = 'dpp' in mn
            self.perm = mn.startswith('v_permlane')
            self.rl = mn.startswith('v_readlane') or mn.startswith('v_readfirstlane')
        else:
            raise ValueError('unknown instruction ' + self.text)

    def cost(self):
        if self.kind is not None:
            return 0
        if self.cls == 'nop':
            return 4 * self.n
        if self.cls == 'valu' and self.trans:
            return 8
        if self.cls == 'mfma':
            return 8
        return 4


class Asm:
    LDS_LAT = 160
    VM_LAT = 1500

    def __init__(self):
        self.L = []
        self.notes = []

    def __call__(self, text, tag=None):
        for t in text.split('\n'):
            t = t.strip()
            if t:
                self.L.append(Ins(t, tag=tag))

    def add(self, item):
        if isinstance(item, Ins):
            self.L.append(item)
        elif isinstance(item, tuple):
            self(item[0], tag=item[1])
        else:
            self(item)

    def raw(self, text):
        self.L.append(Ins(text, kind='raw'))

    def label(self, name):
        self.L.append(Ins(name + ':', kind='label'))

    def reset(self):
        self.L.append(Ins('', kind='reset'))

    def pseudo(self, kind):
        self.L.append(Ins('', kind=kind))

    def wait_vm(self, tag):
        self.L.append(waitvm(tag))

    def wait_lds(self, tag):
        self.L.append(waitlds(tag))

    def loop_start(self, name):
        self.L.append(Ins('', kind='lstart', arg=name))
        self.label(name)

    def loop_end(self, name):
        self.L.append(Ins('', kind='lend', arg=name))

    def _trace(self, L, reps=3):
        out = []
        stack = []
        i = 0
        cnt = {}
        while i < len(L):
            x = L[i]
            if x.kind == 'lstart':
                stack.append(i)
                cnt[i] = 0
            elif x.kind == 'lend':
                s = stack[-1]
                cnt[s] += 1
                if cnt[s] < reps:
                    i = s + 1
                    continue
                stack.pop()
            else:
                out.append(i)
            i += 1
        return out

    def _insert_waits(self):
        L = self.L
        need = {}
        vmq, lgq = [], []
        saved = []
        now = 0
        mf_free = 0

        def require(i, q, idx, which, lat, cap):
            n = len(q) - 1 - idx
            k = idx
            while k + 1 < len(q) and now - q[k + 1][3] > lat:
                k += 1
            n2 = len(q) - 1 - k
            if n < cap:
                d = need.setdefault(i, {})
                d[which] = min(d.get(which, 99), n2)
                del q[:k + 1]
            else:
                del q[:idx + 1]

        for i in self._trace(L):
            x = L[i]
            if x.kind == 'reset':
                vmq.clear()
                lgq.clear()
                continue
            if x.kind == 'unvm':
                if vmq:
                    vmq.pop()
                continue
            if x.kind == 'save':
                saved.append((list(vmq), list(lgq)))
                continue
            if x.kind == 'restore':
                v_, l_ = saved.pop()
                vmq[:] = v_
                lgq[:] = l_
                continue
            if x.kind == 'waitvm':
                idx = max((j for j, e in enumerate(vmq) if e[2] == x.arg), default=-1)
                if idx >= 0:
                    require(i, vmq, idx, 'vm', self.VM_LAT, 63)
                continue
            if x.kind == 'waitlds':
                idx = max((j for j, e in enumerate(lgq) if e[2] == x.arg), default=-1)
                if idx >= 0:
                    if any(e[0] == 'smem' for e in lgq):
                        need.setdefault(i, {})['lg'] = 0
                        lgq.clear()
                    else:
                        require(i, lgq, idx, 'lg', self.LDS_LAT, 15)
                continue
            if x.kind is not None:
                continue
            touched = set(x.rd) | set(x.wr)
            idx = max((j for j, e in enumerate(vmq) if e[1] & touched), default=-1)
            if idx >= 0:
                require(i, vmq, idx, 'vm', self.VM_LAT, 63)
            idx = max((j for j, e in enumerate(lgq) if e[1] & touched), default=-1)
            if idx >= 0:
                if any(e[0] == 'smem' for e in lgq):
                    need.setdefault(i, {})['lg'] = 0
                    lgq.clear()
                else:
                    require(i, lgq, idx, 'lg', self.LDS_LAT, 15)
            if x.cls == 'wait':
                if x.vm is not None and len(vmq) > x.vm:
                    del vmq[:len(vmq) - x.vm]
                if x.lg is not None and len(lgq) > x.lg:
                    if x.lg == 0 or not any(e[0] == 'smem' for e in lgq):
                        del lgq[:len(lgq) - x.lg]
            elif x.cls in ('vld', 'vst', 'dma'):
                vmq.append((x.cls, set(x.wr), x.tag, now))
            elif x.cls in ('dsr', 'dsw', 'smem'):
                lgq.append((x.cls, set(x.wr), x.tag, now))
            if x.cls == 'mfma':
                now = max(now, mf_free)
                mf_free = now + 4 * x.passes
            now += x.cost()
        out = []
        for i, x in enumerate(L):
            if i in need:
                d = need[i]
                s = 's_waitcnt'
                if 'vm' in d:
                    s += f" vmcnt({d['vm']})"
                if 'lg' in d:
                    s += f" lgkmcnt({d['lg']})"
                prev = out[-1] if out else None
                if prev is not None and prev.kind is None and prev.cls == 'wait' and getattr(prev, 'auto', False):
                    vm = [v for v in (prev.vm, d.get('vm')) if v is not None]
                    lg = [v for v in (prev.lg, d.get('lg')) if v is not None]
                    s = 's_waitcnt' + (f' vmcnt({min(vm)})' if vm else '') + (f' lgkmcnt({min(lg)})' if lg else '')
                    out.pop()
                w = Ins(s)
                w.auto = True
                out.append(w)
            if x.kind not in ('waitvm', 'waitlds'):
                out.append(x)
        self.L = out

    def _hazards(self):
        L = self.L
        pad = {}
        hist = []
        pos = 0
        for i in self._trace(L):
            x = L[i]
            if x.kind == 'reset':
                hist = []
                continue
            if x.kind is not None:
                continue
            req = 0
            rd, wr = set(x.rd), set(x.wr)
            for (p, pp) in hist:
                dist = pos - pp - 1
                n = 0
                pw = set(p.wr)
                if p.cls == 'valu':
                    vw = {r for r in pw if r[0] in 'va'}
                    sw = {r for r in pw if r[0] == 's'}
                    if x.cls == 'mfma' and vw & rd:
                        n = max(n, 2)
                    if x.cls == 'valu':
                        if p.trans and not x.trans and vw & rd:
                            n = max(n, 1)
                        if (x.perm or x.dpp) and vw & rd:
                            n = max(n, 2)
                        if x.rl and vw & rd:
                            n = max(n, 1)
                        implicit_vcc = ('s', 'vcc') in sw and (x.mn.startswith('v_cndmask') or x.mn.startswith('v_addc'))
                        if sw & rd or implicit_vcc:
                            n = max(n, 4 if x.rl else 2)
                        if ('sdwa' in p.mn or 'op_sel' in p.mods) and vw & (rd | wr):
                            n = max(n, 1)
                    if p.trans and x.cls in ('dsw', 'vst', 'dsr', 'vld', 'dma') and vw & rd:
                        n = max(n, 1)
                    if x.cls in ('vld', 'vst', 'dma') and sw & rd:
                        n = max(n, 5)
                    if x.cls in ('salu', 'smem') and sw & rd:
                        n = max(n, 1)
                elif p.cls == 'mfma':
                    big = p.passes == 8
                    if x.cls == 'mfma':
                        if pw & (set(x.A) | set(x.B)):
                            n = max(n, 12 if big else 8)
                        if pw & set(x.C) and not (p.wr == x.C and p.passes == x.passes):
                            n = max(n, 10 if big else 6)
                    elif x.cls in ('valu', 'dsr', 'dsw', 'vld', 'vst', 'dma'):
                        if pw & (rd | wr):
                            n = max(n, 12 if big else 8)
                        if x.cls == 'valu' and set(p.C) & wr:
                            n = max(n, 7 if big else 3)
                elif p.cls == 'salu':
                    if ('s', 'm0') in pw and x.cls == 'dma':
                        n = max(n, 1)
                elif p.cls == 'vst':
                    if len(p.data) >= 3 and set(p.data) & wr:
                        n = max(n, 2)
                if n > dist:
                    req = max(req, n - dist)
            if req > pad.get(i, 0):
                pad[i] = req
            pos += pad.get(i, 0)
            hist.append((x, pos))
            if len(hist) > 24:
                hist.pop(0)
            pos += x.n if x.cls == 'nop' else 1
        out = []
        self.npad = 0
        for i, x in enumerate(L):
            if i in pad:
                out.append(Ins(f's_nop {pad[i] - 1}'))
                self.npad += pad[i]
                self.notes.append(f'pad {pad[i]} before: {x.text}')
            out.append(x)
        self.L = out

    def finish(self):
        self._insert_waits()
        self._hazards()
        lines = []
        for x in self.L:
            if x.kind in ('lstart', 'lend', 'reset', 'unvm', 'save', 'restore'):
                continue
            if x.kind in ('label', 'raw'):
                lines.append(x.text)
            else:
                lines.append('  ' + x.text)
        return '\n'.join(lines) + '\n'


def waitvm(tag):
    return Ins('', kind='waitvm', arg=tag)


def waitlds(tag):
    return Ins('', kind='waitlds', arg=tag)


def vr(base, n=1, k='v'):
    return f'{k}{base}' if n == 1 else f'{k}[{base}:{base + n - 1}]'


def ar(base, n=1):
    return vr(base, n, 'a')


def sr(base, n=1):
    return vr(base, n, 's')


def weave(a, mfmas, gaps, pre=None):
    for it in (pre or []):
        a.add(it)
    for i, m in enumerate(mfmas):
        a.add(m)
        for it in gaps.get(i, []) if isinstance(gaps, dict) else gaps[i]:
            a.add(it)
```

```python
import math, struct, sys
from asmlib import *

NAME = 'adaLN_cond__sliding_block_cached__dense_activation_silu__prompt'
KN = NAME + '_kernel'
KA = dict(x=0, k=8, v=16, wq=24, wo=32, w1=48, w2=56, c=64, wmod=72, out=80, dbg=88, ws=96)
SZ = dict(x=2097152, k=4194304, v=4194304, wq=4194304, wo=4194304, w1=1835008, w2=1835008, c=1024,
          wmod=3145728, out=2097152, dbg=256, ws=268435456)
WS_MOD, WS_EP, WS_F1, WS_F2, WS_F3 = 0, 0x8000, 0x10000, 0x20000, 0x30000
WS_P1, WS_H2, WS_X1, WS_HB, WS_ST = 1 << 20, 20 << 20, 24 << 20, 32 << 20, 48 << 20
LOG2E = 1.4426950408889634
QSCALE = LOG2E / math.sqrt(128.0)
LDS_W = 65536
WREG = 24576
SPIN = 400000

OPT = dict(stamps=False, fmap='local')

S_WAVE = 3
SX, SWQ, SK, SV, SWS = 4, 8, 12, 16, 20
S_G, S_R, S_WB, S_OFF, S_BASE, S_KV, S_TAG, S_R2, S_S, S_CNT = 24, 25, 26, 27, 28, 29, 30, 31, 32, 33
S_T = 34
SC, SWM = 40, 44
S_ST = 40
SWO, SW1, SW2, SOUT = 40, 44, 48, 52
S_P = 56
S_U = 60
V_LANE, V_TA, V_BA, V_DW, V_T = 1, 2, 6, 10, 14


def f2u(x):
    return '0x%08x' % struct.unpack('<I', struct.pack('<f', x))[0]


def srd(a, s, name):
    a(f's_load_dwordx2 {sr(s, 2)}, s[0:1], {KA[name]}')
    a(f's_mov_b32 s{s + 2}, {SZ[name]}')
    a(f's_mov_b32 s{s + 3}, 0x20000')


_st = {'n': 0}


def stamp(a):
    if OPT['stamps']:
        a(f"s_memrealtime {sr(72 + 2 * _st['n'], 2)}")
        _st['n'] += 1
        assert _st['n'] <= 15


def stamp_flush(a, part):
    if not OPT['stamps']:
        return
    a(f's_lshl_b32 s70, s2, 8\ns_lshl_b32 s71, s{S_WAVE}, 6\ns_add_u32 s70, s70, s71\ns_add_u32 s70, s70, {WS_ST + part * 65536}')
    a('s_waitcnt lgkmcnt(0)')
    for i in range(_st['n']):
        a(f'v_mov_b32 v0, s{72 + 2 * i}')
        a(f'buffer_store_dword v0, off, {sr(SWS, 4)}, s70 offset:{4 * i}')
    _st['n'] = 0


def round_bf16(a, regs, tmp):
    for i in range(0, len(regs), 2):
        a(f'v_cvt_pk_bf16_f32 v{tmp}, v{regs[i]}, v{regs[i + 1]}')
        a(f'v_lshlrev_b32 v{regs[i]}, 16, v{tmp}')
        a(f'v_and_b32 v{regs[i + 1]}, 0xffff0000, v{tmp}')


def unpack8(a, dst, src, step=1):
    for i in range(4):
        a(f'v_lshlrev_b32 v{dst + 2 * i}, 16, v{src + step * i}')
        a(f'v_and_b32 v{dst + 2 * i + 1}, 0xffff0000, v{src + step * i}')


def unpack_gran(a, b):
    for i in range(4):
        a(f'v_and_b32 v{b + 2 * i + 1}, 0xffff0000, v{b + 2 * i}')
        a(f'v_lshlrev_b32 v{b + 2 * i}, 16, v{b + 2 * i}')


def row_allreduce(a, regs):
    for sh in (8, 4, 2, 1):
        for r in regs:
            a(f'v_add_f32_dpp v{r}, v{r}, v{r} row_ror:{sh} row_mask:0xf bank_mask:0xf')


def row_stats(a, b, T0, dS, dQ, acc=False):
    a(f'v_pk_add_f32 {vr(T0, 2)}, {vr(b, 2)}, {vr(b + 2, 2)}')
    a(f'v_pk_mul_f32 {vr(T0 + 4, 2)}, {vr(b, 2)}, {vr(b, 2)}')
    a(f'v_pk_add_f32 {vr(T0 + 2, 2)}, {vr(b + 4, 2)}, {vr(b + 6, 2)}')
    a(f'v_pk_fma_f32 {vr(T0 + 4, 2)}, {vr(b + 2, 2)}, {vr(b + 2, 2)}, {vr(T0 + 4, 2)}')
    a(f'v_pk_add_f32 {vr(T0, 2)}, {vr(T0, 2)}, {vr(T0 + 2, 2)}')
    a(f'v_pk_fma_f32 {vr(T0 + 4, 2)}, {vr(b + 4, 2)}, {vr(b + 4, 2)}, {vr(T0 + 4, 2)}')
    a(f'v_add_f32 v{dS}, v{T0}, v{T0 + 1}')
    a(f'v_pk_fma_f32 {vr(T0 + 4, 2)}, {vr(b + 6, 2)}, {vr(b + 6, 2)}, {vr(T0 + 4, 2)}')
    a(f'v_add_f32 v{dQ}, v{T0 + 4}, v{T0 + 5}')


def ln_stats(a, S, Q):
    for s in S:
        a(f'v_mul_f32 v{s}, {f2u(1.0 / 512)}, v{s}')
    for q in Q:
        a(f'v_mul_f32 v{q}, {f2u(1.0 / 512)}, v{q}')
    for s, q in zip(S, Q):
        a(f'v_fma_f32 v{q}, -v{s}, v{s}, v{q}')
    for q in Q:
        a(f'v_max_f32 v{q}, 0, v{q}')
    for q in Q:
        a(f'v_add_f32 v{q}, {f2u(1e-5)}, v{q}')
    for q in Q:
        a(f'v_rsq_f32 v{q}, v{q}')
    for s, q in zip(S, Q):
        a(f'v_mul_f32_e64 v{s}, -v{s}, v{q}')


def setup_ta_ba(a):
    t, l = V_T, V_LANE
    a(f'v_lshrrev_b32 v{t}, 4, v{l}')
    a(f'v_bfe_u32 v{t + 1}, v{l}, 2, 2')
    a(f'v_lshl_add_u32 v{t + 2}, v{t}, 3, v{t + 1}')
    a(f'v_lshlrev_b32 v{t + 2}, 7, v{t + 2}')
    a(f'v_and_b32 v{t + 3}, 3, v{l}')
    a(f'v_lshl_add_u32 v{t + 2}, v{t + 3}, 3, v{t + 2}')
    a(f'v_add_u32 v{t + 2}, s{S_WB}, v{t + 2}')
    a(f'v_bfe_u32 v{t + 3}, v{l}, 3, 2')
    for d in range(4):
        a(f'v_xor_b32 v{t + 4}, {d}, v{t + 3}')
        a(f'v_lshl_add_u32 v{V_TA + d}, v{t + 4}, 5, v{t + 2}')
    a(f'v_and_b32 v{t + 1}, 15, v{l}')
    for k in range(4):
        a(f'v_add_u32 v{t + 2}, {4 * k}, v{t}')
        a(f'v_xor_b32 v{t + 2}, v{t + 2}, v{t + 1}')
        a(f'v_lshlrev_b32 v{t + 2}, 4, v{t + 2}')
        a(f'v_lshl_add_u32 v{V_BA + k}, v{t + 1}, 10, v{t + 2}')


def dw_items(stride, dst):
    t, l = V_T, V_LANE
    its = [f'v_lshrrev_b32 v{t}, 3, v{l}', f'v_mul_u32_u24 v{t}, {stride}, v{t}', f'v_and_b32 v{t + 1}, 1, v{l}',
           f'v_lshl_add_u32 v{t}, v{t + 1}, 4, v{t}', f'v_bfe_u32 v{t + 1}, v{l}, 1, 2', f'v_bfe_u32 v{t + 2}, v{l}, 4, 1',
           f'v_xor_b32 v{t + 1}, v{t + 1}, v{t + 2}']
    for i in range(4):
        its += [f'v_xor_b32 v{t + 2}, {(i & 1) << 1}, v{t + 1}', f'v_lshl_add_u32 v{t + 2}, v{t + 2}, 5, v{t}',
                f'v_add_u32 v{dst + i}, {i * (8 * stride - 1024)}, v{t + 2}']
    return its


def w_dma(srd_s, s_base, const_off, stride, slot, tag, dw=V_DW):
    out = []
    for i in range(8):
        g = []
        if i % 4 == 0:
            g.append(f's_add_u32 m0, s{S_WB}, {slot * 8192 + (i // 4) * 4096}')
            g.append(f's_add_u32 s{S_OFF}, s{s_base}, {const_off + 32 * (i // 4) * stride}')
        g.append((f'buffer_load_dwordx4 v{dw + i % 4}, {sr(srd_s, 4)}, s{S_OFF} offen offset:{(i % 4) * 1024} lds',
                  f'{tag}.{i // 4}'))
        out.append(g)
    return out


def a_reads(dst, slot, c, tag, k='a'):
    return [(f'ds_read_b64_tr_b16 {vr(dst + 8 * d + 4 * c + 2 * j, 2, k)}, v{V_TA + d} offset:{slot * 8192 + (32 * c + 4 * j) * 128}', f'{tag}.{c}')
            for d in range(4) for j in range(2)]


def b_read(dst, ks, qt, k='a'):
    return f'ds_read_b128 {vr(dst, 4, k)}, v{V_BA + (ks & 3)} offset:{qt * 16384 + (ks >> 2) * 256}'


def gemm_mfmas(acc, abuf, bbuf, first, ak='a', bk='a'):
    out = []
    for d in range(4):
        for q in range(4):
            qt = q if d % 2 == 0 else 3 - q
            for c in range(2):
                D = vr(acc + 16 * d + 4 * qt, 4)
                C = '0' if (first and c == 0) else D
                out.append(f'v_mfma_f32_16x16x32_bf16 {D}, {vr(abuf + 8 * d + 4 * c, 4, ak)}, {vr(bbuf + 16 * c + 4 * qt, 4, bk)}, {C}')
    return out


def place_step(dmas, reads, extra=None, n=32):
    gaps = [[] for _ in range(n)]
    dpos = [2 + 4 * i for i in range(len(dmas))]
    for g, p in zip(dmas, dpos):
        pre = g[:-1]
        for k, it in enumerate(pre):
            gaps[max(0, p - len(pre) + k)].append(it)
        gaps[p].append(g[-1])
    gi = 0
    for it in reads:
        while gi in dpos and gi < n - 1:
            gi += 1
        gaps[gi].append(it)
        if not isinstance(it, Ins):
            gi = min(gi + 1, n - 1)
    for p, it in (extra or []):
        gaps[p].append(it)
    return gaps


def emit(a, *lists):
    for L in lists:
        for it in L:
            if isinstance(it, list):
                emit(a, it)
            else:
                a.add(it)


_lab = {'n': 0}


def poll(a, loads, tagregs, tmp):
    _lab['n'] += 1
    L = f'Lpoll{_lab["n"]}'
    a(f's_mov_b32 s{S_CNT}, 0')
    a.label(L)
    for t in loads:
        a(t)
    a(f's_add_u32 s{S_CNT}, s{S_CNT}, 1')
    a('s_waitcnt vmcnt(0)')
    poll_check(a, tagregs, tmp)
    a(f's_cbranch_vccz {L}_ok')
    a(f's_cmp_lt_u32 s{S_CNT}, {SPIN}')
    a(f's_cbranch_scc1 {L}')
    a.label(L + '_ok')


def poll_check(a, tagregs, tmp):
    if len(tagregs) == 1:
        a(f'v_cmp_ne_u32 vcc, s{S_TAG}, v{tagregs[0]}')
    else:
        a(f'v_xor_b32 v{tmp}, s{S_TAG}, v{tagregs[0]}')
        for r in tagregs[1:]:
            a(f'v_xor_b32 v{tmp + 1}, s{S_TAG}, v{r}')
            a(f'v_or_b32 v{tmp}, v{tmp}, v{tmp + 1}')
        a(f'v_cmp_ne_u32 vcc, 0, v{tmp}')
    a('s_nop 4')


def late_poll(a, loads, tagregs, tmp):
    _lab['n'] += 1
    L = f'Lchk{_lab["n"]}'
    poll_check(a, tagregs, tmp)
    a(f's_cbranch_vccz {L}')
    a.pseudo('save')
    poll(a, loads, tagregs, tmp)
    a.label(L)
    a.pseudo('restore')


def flag_store(a, s_off, vtmp):
    a(f'v_mov_b32 v{vtmp}, s{S_TAG}')
    a('s_mov_b64 exec, 1')
    a(f'buffer_store_dword v{vtmp}, off, {sr(SWS, 4)}, s{s_off} sc1')
    a('s_mov_b64 exec, -1')


def gen(a):
    a.raw(f'.globl {KN}\n.p2align 8\n.type {KN},@function')
    a.label(KN)
    a.reset()
    a(f's_cmp_ge_u32 s2, 256\ns_cbranch_scc1 L_end')
    stamp(a)
    srd(a, SWS, 'ws'); srd(a, SWM, 'wmod'); srd(a, SC, 'c'); srd(a, SX, 'x'); srd(a, SWQ, 'wq'); srd(a, SK, 'k'); srd(a, SV, 'v')
    a(f'v_lshrrev_b32 v{V_T}, 6, v0\nv_and_b32 v{V_LANE}, 63, v0')
    a(f's_and_b32 s{S_G}, s2, 7\ns_lshr_b32 s{S_R}, s2, 3')
    a(f'v_readfirstlane_b32 s{S_WAVE}, v{V_T}')
    S_CA, S_CB = S_R2, S_S
    a(f's_lshl_b32 s{S_CA}, s{S_G}, 8\ns_lshl_b32 s{S_T}, s{S_R}, 3\ns_add_u32 s{S_CA}, s{S_CA}, s{S_T}')
    a(f's_lshl_b32 s{S_CB}, s{S_CA}, 1\ns_add_u32 s{S_CB}, s{S_CB}, 2048')
    a(f's_add_u32 s{S_T}, s{S_CA}, 1572864\ns_add_u32 s{S_T + 1}, s{S_CB}, 1572864')
    XR, XF, MA, MS, T0 = 20, 96, 224, 232, 84
    V_L16, V_L32 = 240, 241
    MB = 96
    a(f'v_mul_u32_u24 v{MB}, 6144, v0\nv_lshlrev_b32 v{MB + 1}, 1, v0')
    a(f'v_lshlrev_b32 v{V_L16}, 4, v{V_LANE}\nv_lshlrev_b32 v{V_L32}, 5, v{V_LANE}')
    a(f's_lshl_b32 s{S_T + 2}, s{S_R}, 16\ns_lshl_b32 s{S_T + 3}, s{S_WAVE}, 14\ns_add_u32 s{S_T + 2}, s{S_T + 2}, s{S_T + 3}')
    a('s_waitcnt lgkmcnt(0)')
    a(f's_load_dword s{S_TAG}, {sr(SWS, 2)}, {WS_EP}')
    a(f'buffer_load_dwordx2 {vr(MB + 8, 2)}, v{MB}, {sr(SWM, 4)}, s{S_CA} offen\nbuffer_load_dwordx2 {vr(MB + 14, 2)}, v{MB}, {sr(SWM, 4)}, s{S_T} offen')
    a(f'buffer_load_ushort v{MB + 4}, v{MB + 1}, {sr(SC, 4)}, 0 offen\nbuffer_load_ushort v{MB + 5}, v{MB + 1}, {sr(SC, 4)}, 0 offen offset:512')
    a(f'buffer_load_dwordx4 {vr(MB + 10, 4)}, v{MB}, {sr(SWM, 4)}, s{S_CB} offen\nbuffer_load_dwordx4 {vr(MB + 16, 4)}, v{MB}, {sr(SWM, 4)}, s{S_T + 1} offen')

    def x_load(i):
        its = []
        if i and i % 4 == 0:
            its.append(f's_add_u32 s{S_T + 2}, s{S_T + 2}, 4096')
        its.append(f'buffer_load_dwordx4 {vr(XR + 4 * i, 4)}, v{V_L16}, {sr(SX, 4)}, s{S_T + 2} offen offset:{(i % 4) * 1024}')
        return its
    NX0 = OPT.get('nx0', 4)
    for i in range(NX0):
        emit(a, x_load(i))
    a(f's_mul_i32 s{S_WB}, s{S_WAVE}, {WREG}\ns_add_u32 s{S_WB}, s{S_WB}, {LDS_W}')
    emit(a, dw_items(8192, V_DW))
    setup_ta_ba(a)
    a(f's_lshl_b32 s{S_BASE}, s{S_G}, 10\ns_lshl_b32 s{S_T + 3}, s{S_WAVE}, 8\ns_add_u32 s{S_BASE}, s{S_BASE}, s{S_T + 3}')
    a(f's_waitcnt lgkmcnt(0)\ns_add_u32 s{S_TAG}, s{S_TAG}, 0x9e3779b1')
    for r in (MB + 4, MB + 5):
        a(f'v_lshlrev_b32 v{r}, 16, v{r}')
    for r in (MB + 4, MB + 5):
        a(f'v_mul_f32 v{r + 2}, {f2u(-LOG2E)}, v{r}')
    for r in (MB + 4, MB + 5):
        a(f'v_exp_f32 v{r + 2}, v{r + 2}')
    for r in (MB + 4, MB + 5):
        a(f'v_add_f32 v{r + 2}, 1.0, v{r + 2}')
    for r in (MB + 4, MB + 5):
        a(f'v_rcp_f32 v{r + 2}, v{r + 2}')
    for r in (MB + 4, MB + 5):
        a(f'v_mul_f32 v{r}, v{r}, v{r + 2}')
    round_bf16(a, [MB + 4, MB + 5], MB + 6)
    AC = MB + 20
    for i in range(6):
        a(f'v_lshlrev_b32 v{MB + 32}, 16, v{MB + 8 + i}\nv_and_b32 v{MB + 33}, 0xffff0000, v{MB + 8 + i}')
        a(f'v_lshlrev_b32 v{MB + 34}, 16, v{MB + 14 + i}\nv_and_b32 v{MB + 35}, 0xffff0000, v{MB + 14 + i}')
        a(f'v_mul_f32 v{AC + 2 * i}, v{MB + 4}, v{MB + 32}\nv_mul_f32 v{AC + 1 + 2 * i}, v{MB + 4}, v{MB + 33}')
        a(f'v_fmac_f32 v{AC + 2 * i}, v{MB + 5}, v{MB + 34}\nv_fmac_f32 v{AC + 1 + 2 * i}, v{MB + 5}, v{MB + 35}')
    for q in range(3):
        b = AC + 4 * q
        a(f'v_permlane32_swap_b32 v{b}, v{b + 2}\nv_permlane32_swap_b32 v{b + 1}, v{b + 3}')
    for q in range(3):
        b = AC + 4 * q
        a(f'v_add_f32 v{b}, v{b}, v{b + 2}\nv_add_f32 v{b + 1}, v{b + 1}, v{b + 3}')
    for q in range(3):
        a(f'v_permlane16_swap_b32 v{AC + 4 * q}, v{AC + 4 * q + 1}')
    for q in range(3):
        a(f'v_add_f32 v{AC + 4 * q}, v{AC + 4 * q}, v{AC + 4 * q + 1}')
    row_allreduce(a, [AC, AC + 4, AC + 8])
    a(f'v_lshrrev_b32 v{MB}, 4, v0\nv_lshlrev_b32 v{MB}, 2, v{MB}')
    a(f'ds_write_b32 v{MB}, v{AC}\nds_write_b32 v{MB}, v{AC + 4} offset:64\nds_write_b32 v{MB}, v{AC + 8} offset:128')
    a('s_waitcnt lgkmcnt(0)\ns_barrier')
    a(f's_cmp_lg_u32 s{S_WAVE}, 0\ns_cbranch_scc1 L_modpub')
    a(f'v_and_b32 v{MB}, 3, v{V_LANE}\nv_lshlrev_b32 v{MB + 1}, 6, v{MB}')
    for w in range(4):
        a(f'ds_read_b128 {vr(MB + 4 + 4 * w, 4)}, v{MB + 1} offset:{16 * w}')
    a(f's_lshl_b32 s{S_T}, s{S_CA}, 1\ns_lshl_b32 s{S_T + 1}, s{S_CB}, 1\ns_sub_u32 s{S_T + 1}, s{S_T + 1}, 16')
    a(f'v_lshlrev_b32 v{MB + 1}, 4, v{MB}\nv_add_u32 v{MB + 1}, s{S_T + 1}, v{MB + 1}\nv_mov_b32 v{MB + 2}, s{S_T}')
    a(f'v_cmp_eq_u32 vcc, 0, v{MB}\nv_cndmask_b32 v{MB + 1}, v{MB + 1}, v{MB + 2}, vcc')
    for p in range(2):
        b = MB + 4 + 2 * p
        a(f'v_pk_add_f32 {vr(b, 2)}, {vr(b, 2)}, {vr(b + 4, 2)}\nv_pk_add_f32 {vr(b + 8, 2)}, {vr(b + 8, 2)}, {vr(b + 12, 2)}')
    for p in range(2):
        b = MB + 4 + 2 * p
        a(f'v_pk_add_f32 {vr(b, 2)}, {vr(b, 2)}, {vr(b + 8, 2)}')
    a(f'v_cvt_pk_bf16_f32 v{MB + 4}, v{MB + 4}, v{MB + 5}\nv_cvt_pk_bf16_f32 v{MB + 6}, v{MB + 6}, v{MB + 7}')
    a(f'v_mov_b32 v{MB + 5}, s{S_TAG}\nv_mov_b32 v{MB + 7}, s{S_TAG}')
    a('s_mov_b64 exec, 7')
    a(f'buffer_store_dwordx4 {vr(MB + 4, 4)}, v{MB + 1}, {sr(SWS, 4)}, 0 offen offset:{WS_MOD} sc1')
    a('s_mov_b64 exec, -1')
    a('s_nop 1')
    a.label('L_modpub')
    a.pseudo('unvm')
    stamp(a)
    for i in range(NX0, 16):
        emit(a, x_load(i))
    DUM = 255
    a(f'v_lshrrev_b32 v{V_T}, 3, v{V_LANE}\nv_lshlrev_b32 v{V_T}, 13, v{V_T}\nv_and_b32 v{V_T + 1}, 7, v{V_LANE}\nv_lshl_add_u32 v{V_T}, v{V_T + 1}, 7, v{V_T}')
    a(f's_lshl_b32 s{S_T}, s{S_R}, 17\ns_and_b32 s{S_T + 1}, s{S_WAVE}, 1\ns_lshl_b32 s{S_T + 1}, s{S_T + 1}, 16\ns_add_u32 s{S_T}, s{S_T}, s{S_T + 1}')
    a(f's_lshl_b32 s{S_T + 1}, s{S_G}, 10\ns_add_u32 s{S_T}, s{S_T}, s{S_T + 1}')
    a(f'buffer_load_dword a{DUM}, v{V_T}, {sr(SWQ, 4)}, s{S_T} offen')
    qslot = lambda t: (t + 2) % 3
    q_dma = lambda t: w_dma(SWQ, S_BASE, (t >> 1) * 64 * 8192 + (t & 1) * 128, 8192, qslot(t), f'wq{t}')
    STS = [224 + i for i in range(16)]
    STQ = [XR + 4 * i for i in range(16)]
    for i in range(16):
        unpack8(a, XF + 8 * i, XR + 4 * i)
        row_stats(a, XF + 8 * i, T0, STS[i], STQ[i])
        if i == 5:
            a(f's_getpc_b64 {sr(S_T, 2)}')
            a.label('L_pcref')
            a(f's_and_b32 s{S_T + 2}, s{S_R}, 7\ns_lshl_b32 s{S_T + 2}, s{S_T + 2}, 13')
            a(f'v_lshlrev_b32 v{V_T}, 7, v{V_LANE}\nv_add_u32 v{V_T + 1}, s{S_T + 2}, v{V_T}\nv_min_u32 v{V_T + 1}, L_end-L_pcref, v{V_T + 1}')
            a(f'global_load_dword a{DUM - 1}, v{V_T + 1}, {sr(S_T, 2)}')
            a(f's_lshl_b32 s{S_KV}, s{S_G}, 19\ns_and_b32 s{S_T + 2}, s{S_R}, 15\ns_lshl_b32 s{S_T + 2}, s{S_T + 2}, 13\ns_add_u32 s{S_T + 2}, s{S_T + 2}, s{S_KV}')
            a(f's_add_u32 s{S_T + 2}, s{S_T + 2}, {1536 * 256}')
            a(f'buffer_load_dword a{DUM - 2}, v{V_T}, {sr(SK, 4)}, s{S_T + 2} offen')
            a(f'buffer_load_dword a{DUM - 3}, v{V_T}, {sr(SV, 4)}, s{S_T + 2} offen')
        if i in (9, 11, 13):
            emit(a, q_dma((i - 9) // 2))
    stamp(a)
    MG = 52
    for B in (STS, STQ):
        for i in range(8):
            a(f'v_permlane32_swap_b32 v{B[i]}, v{B[i + 8]}')
    for B in (STS, STQ):
        for i in range(8):
            a(f'v_add_f32 v{B[i]}, v{B[i]}, v{B[i + 8]}')
    mod_loads = [f'buffer_load_dwordx4 {vr(MG + 4 * k, 4)}, v{V_L32}, {sr(SWS, 4)}, 0 offen offset:{WS_MOD + off} sc1'
                 for k, off in enumerate((2048, 2064, 0, 16))]
    emit(a, mod_loads)
    for B in (STS, STQ):
        for i in range(4):
            a(f'v_permlane16_swap_b32 v{B[i]}, v{B[i + 4]}')
    for B in (STS, STQ):
        for i in range(4):
            a(f'v_add_f32 v{B[i]}, v{B[i]}, v{B[i + 4]}')
    row_allreduce(a, STS[:4] + STQ[:4])
    ln_stats(a, STS[:4], STQ[:4])
    for i in range(4):
        for row in range(4):
            rho = i + 4 * row
            a(f'v_readlane_b32 s{S_ST + 2 * rho}, v{STQ[i]}, {16 * row}')
            a(f'v_readlane_b32 s{S_ST + 2 * rho + 1}, v{STS[i]}, {16 * row}')
    for i in range(16):
        for p in range(4):
            b = XF + 8 * i + 2 * p
            s = sr(S_ST + 2 * i, 2)
            a(f'v_pk_fma_f32 {vr(b, 2)}, {vr(b, 2)}, {s}, {s} op_sel:[0,0,1] op_sel_hi:[1,0,1]')
    srd(a, SWO, 'wo'); srd(a, SW1, 'w1'); srd(a, SW2, 'w2'); srd(a, SOUT, 'out')
    stamp(a)
    late_poll(a, mod_loads, [MG + 1 + 2 * i for i in range(8)], T0)
    stamp(a)
    MA, MS = MG, MG + 8
    unpack_gran(a, MA)
    unpack_gran(a, MS)
    for i in range(8):
        a(f'v_add_f32 v{MA + i}, 1.0, v{MA + i}')
    round_bf16(a, [MA + i for i in range(8)], T0)
    for i in range(16):
        a(f'v_mul_f32 v{MA + i}, {f2u(QSCALE)}, v{MA + i}')
    a(f's_lshl_b32 s{S_T}, s{S_WAVE}, 14\nv_add_u32 v{V_L32}, s{S_T}, v{V_L16}')
    for i in range(16):
        b = XF + 8 * i
        for p in range(4):
            a(f'v_pk_fma_f32 {vr(b + 2 * p, 2)}, {vr(b + 2 * p, 2)}, {vr(MA + 2 * p, 2)}, {vr(MS + 2 * p, 2)}')
        d = 68 + 4 * (i % 4)
        for p in range(4):
            a(f'v_cvt_pk_bf16_f32 v{d + p}, v{b + 2 * p}, v{b + 2 * p + 1}')
        a(f'v_xor_b32 v{T0 + i % 4}, {i << 4}, v{V_L32}')
        a(f'ds_write_b128 v{T0 + i % 4}, {vr(d, 4)} offset:{i * 1024}')
    AB, BB = 0, 64
    a.wait_vm('wq0.1')
    emit(a, a_reads(AB, qslot(0), 0, 'r0'), a_reads(AB, qslot(0), 1, 'r0'))
    a(f's_or_b32 s{S_T}, s2, s{S_WAVE}\ns_cmp_lg_u32 s{S_T}, 0\ns_cbranch_scc1 L_noep')
    a(f's_mov_b32 s{S_T}, {WS_EP}')
    flag_store(a, S_T, T0 + 4)
    a.label('L_noep')
    a.pseudo('unvm')
    V_KA, V_VA, V_KD = 20, 28, 32
    V_L0, V_L1 = 36, 37
    V_TM = 38
    S0, S1, NM0, NM1, P0, P1 = 48, 64, 80, 96, 112, 120
    ACC = 128
    QF, KF, VF = 128, 192, 224
    t, l = V_TM, V_LANE
    setup = []
    A = lambda s: setup.extend(s.split('\n'))
    A(f'v_bfe_u32 v{t}, v{l}, 2, 2\nv_mul_u32_u24 v{t}, {WREG}, v{t}')
    A(f'v_bfe_u32 v{t + 1}, v{l}, 4, 1\nv_and_b32 v{t + 2}, 3, v{l}\nv_lshl_add_u32 v{t + 1}, v{t + 1}, 2, v{t + 2}')
    A(f'v_lshl_add_u32 v{t}, v{t + 1}, 8, v{t}\nv_add_u32 v{t}, {LDS_W}, v{t}')
    A(f'v_lshrrev_b32 v{t + 1}, 5, v{l}\nv_and_b32 v{t + 2}, 15, v{l}\nv_xor_b32 v{t + 1}, v{t + 1}, v{t + 2}')
    for ks in range(8):
        A(f'v_xor_b32 v{t + 2}, {2 * ks}, v{t + 1}\nv_lshl_add_u32 v{V_KA + ks}, v{t + 2}, 4, v{t}')
    A(f'v_lshrrev_b32 v{t}, 5, v{l}\nv_mul_u32_u24 v{t}, {WREG}, v{t}\nv_add_u32 v{t}, {LDS_W + 2048}, v{t}')
    A(f'v_bfe_u32 v{t + 1}, v{l}, 2, 2\nv_lshl_add_u32 v{t}, v{t + 1}, 8, v{t}')
    A(f'v_bfe_u32 v{t + 2}, v{l}, 4, 1\nv_lshl_add_u32 v{t}, v{t + 2}, 5, v{t}')
    A(f'v_and_b32 v{t + 2}, 1, v{l}\nv_lshl_add_u32 v{t}, v{t + 2}, 4, v{t}')
    A(f'v_bfe_u32 v{t + 2}, v{l}, 1, 1\nv_lshl_add_u32 v{t}, v{t + 2}, 3, v{t}')
    for d in range(4):
        A(f'v_xor_b32 v{t + 2}, {d}, v{t + 1}\nv_lshl_add_u32 v{V_VA + d}, v{t + 2}, 6, v{t}')
    A(f's_lshl_b32 s{S_T}, s{S_WAVE}, 2')
    A(f'v_lshrrev_b32 v{t}, 4, v{l}\nv_add_u32 v{t + 1}, s{S_T}, v{t}')
    A(f'v_and_b32 v{t + 2}, 15, v{l}\nv_xor_b32 v{t + 3}, v{t + 2}, v{t + 1}\nv_lshlrev_b32 v{t + 3}, 4, v{t + 3}')
    A(f'v_lshl_add_u32 v{t + 3}, v{t + 1}, 8, v{t + 3}')
    A(f'v_add_u32 v{V_KD}, {1536 * 256}, v{t + 3}\nv_add_u32 v{V_KD + 1}, {1536 * 256 + 3072}, v{t + 3}')
    A(f'v_lshlrev_b32 v{t}, 2, v{t}\nv_xor_b32 v{t + 3}, v{t + 2}, v{t}\nv_lshlrev_b32 v{t + 3}, 4, v{t + 3}')
    A(f'v_lshl_add_u32 v{t + 3}, v{t + 1}, 8, v{t + 3}')
    A(f'v_add_u32 v{V_KD + 2}, {1536 * 256 - 8192 - 2048}, v{t + 3}\nv_add_u32 v{V_KD + 3}, {1536 * 256 - 8192 + 1024}, v{t + 3}')
    if OPT['fmap'] == 'local':
        A(f's_lshl_b32 s{S_R2}, s{S_G}, 2\ns_lshr_b32 s{S_S}, s{S_R}, 3\ns_add_u32 s{S_R2}, s{S_R2}, s{S_S}\ns_and_b32 s{S_S}, s{S_R}, 7')
    elif OPT['fmap'] == 'half':
        A(f's_lshr_b32 s{S_R2}, s{S_G}, 1\ns_lshl_b32 s{S_R2}, s{S_R2}, 3\ns_lshr_b32 s{S_S}, s{S_R}, 2\ns_add_u32 s{S_R2}, s{S_R2}, s{S_S}')
        A(f's_and_b32 s{S_S}, s{S_G}, 1\ns_lshl_b32 s{S_S}, s{S_S}, 2\ns_and_b32 s{S_T + 1}, s{S_R}, 3\ns_add_u32 s{S_S}, s{S_S}, s{S_T + 1}')

    def kv_dma(p):
        sg = (p + 1) & 3
        its = []
        if p < 15:
            its += [(f'buffer_load_dwordx4 v{V_KD + h}, {sr(SK, 4)}, s{S_OFF} offen offset:{1024 * h} lds', f'kv{p}') for h in range(2)]
        if p >= 0:
            its += [(f'buffer_load_dwordx4 v{V_KD + 2 + h}, {sr(SV, 4)}, s{S_OFF} offen offset:{2048 + 1024 * h} lds', f'kv{p}') for h in range(2)]
        out = [[it] for it in its]
        out[0] = [f's_add_u32 m0, s{S_WB}, {sg * 4096}', f's_add_u32 s{S_OFF}, s{S_KV}, {(p + 1) * 8192}'] + out[0]
        return out

    a('s_waitcnt lgkmcnt(0)\ns_barrier')
    stamp(a)
    for c in range(2):
        for qt in range(4):
            a(b_read(BB + 16 * c + 4 * qt, c, qt))

    def q_epi(dt, Q, tm):
        x = ACC + 16 * dt + 8 * Q
        return [f'v_cvt_pk_bf16_f32 v{tm}, v{x}, v{x + 1}', f'v_cvt_pk_bf16_f32 v{tm + 2}, v{x + 4}, v{x + 5}',
                f'v_cvt_pk_bf16_f32 v{tm + 1}, v{x + 2}, v{x + 3}', f'v_cvt_pk_bf16_f32 v{tm + 3}, v{x + 6}, v{x + 7}'], \
               [f'v_permlane16_swap_b32 v{tm}, v{tm + 2}', f'v_permlane16_swap_b32 v{tm + 1}, v{tm + 3}'] + \
               [f'v_accvgpr_write_b32 a{QF + 32 * Q + 4 * dt + i}, v{tm + i}' for i in range(4)]

    def q_epi_seq(units):
        seq = []
        prev = []
        for k, (dt, Q) in enumerate(units):
            c, w = q_epi(dt, Q, S0 + 4 * (k % 4))
            seq += c + prev
            prev = w
        return seq + ['s_nop 0'] + prev

    su = list(setup)
    for t in range(16):
        kb, half = t >> 1, t & 1
        mf = gemm_mfmas(ACC + 64 * half, AB + 32 * (t & 1), BB + 32 * (kb & 1), kb == 0)
        reads = []
        if t < 15:
            nb = AB + 32 * ((t + 1) & 1)
            reads += [waitvm(f'wq{t + 1}.0')] + a_reads(nb, qslot(t + 1), 0, f'r{t + 1}')
        if kb < 7:
            reads += [b_read(BB + 32 * ((kb + 1) & 1) + 16 * half + 4 * qt, 2 * (kb + 1) + half, qt) for qt in range(4)]
        if t < 15:
            reads += [waitvm(f'wq{t + 1}.1')] + a_reads(nb, qslot(t + 1), 1, f'r{t + 1}')
        if t + 3 < 16:
            dm = q_dma(t + 3)
        elif t == 13:
            dm = kv_dma(-1) + kv_dma(0)
        elif t == 14:
            dm = kv_dma(1) + kv_dma(2)
        else:
            dm = []
        if dm:
            dm[0] = [waitlds(f'r{t}.0')] + dm[0]
            k2 = 2 if t == 13 else 4
            dm[k2] = [waitlds(f'r{t}.1')] + dm[k2]
        extra = []
        if t < 12:
            for p in (3, 5, 7, 9, 11, 13, 19, 21, 23, 25):
                if su:
                    extra.append((p, su.pop(0)))
        if t == 13:
            extra = [(3 + k, it) for k, it in enumerate(dw_items(1024, V_DW))]
        if t == 15:
            seq = q_epi_seq([(dt, Q) for dt in range(4) for Q in range(2)])
            extra = [(min(31, 3 + k * 29 // len(seq)), it) for k, it in enumerate(seq)]
        weave(a, mf, place_step(dm, reads, extra))
    assert not su
    stamp(a)
    a.wait_vm('kv0')
    a('s_barrier')

    def k_read(p, ks):
        return f'ds_read_b128 {ar(KF + 4 * ks, 4)}, v{V_KA + ks} offset:{((p + 1) & 3) * 4096}'

    def v_read(p, i, j):
        ts, dt = i >> 2, i & 3
        return f'ds_read_b64_tr_b16 {ar(VF + 4 * i + 2 * j, 2)}, v{V_VA + dt} offset:{j * 2 * WREG + ((p + 1) & 3) * 4096 + ts * 1024}'

    for ks in range(8):
        a(k_read(-1, ks))
    emit(a, q_epi_seq([(dt, Q) for Q in range(2) for dt in range(4, 8)]))
    a(f's_lshl_b32 s{S_BASE}, s{S_G}, 19\ns_lshl_b32 s{S_T}, s{S_WAVE}, 8\ns_add_u32 s{S_BASE}, s{S_BASE}, s{S_T}')
    oslot = lambda t: (2, 1, 0)[t % 3]
    o_dma = lambda t: w_dma(SWO, S_BASE, (t & 7) * 64 * 1024 + (t >> 3) * 128, 1024, oslot(t), f'wo{t}')

    def qk(S, Q, NM):
        return [f'v_mfma_f32_32x32x16_bf16 {vr(S, 16)}, {ar(KF + 4 * ks, 4)}, {ar(QF + 32 * Q + 4 * ks, 4)}, '
                + ((vr(NM, 16) if NM is not None else '0') if ks == 0 else vr(S, 16)) for ks in range(8)]

    def pv(Q, P, first):
        out = []
        for i in range(8):
            ts, dt = i >> 2, i & 3
            D = vr(ACC + 64 * Q + 16 * dt, 16)
            out.append(f'v_mfma_f32_32x32x16_bf16 {D}, {ar(VF + 4 * i, 4)}, {vr(P + 4 * ts, 4)}, ' + ('0' if first and ts == 0 else D))
        return out

    def sm_items(S, P, Lr):
        sl = [[] for _ in range(17)]
        for i in range(16):
            sl[i].insert(0, f'v_exp_f32 v{S + i}, v{S + i}')
            sl[i + 1].append(f'v_add_f32 v{Lr}, v{Lr}, v{S + i}')
            if i & 1:
                sl[i + 1].append(f'v_cvt_pk_bf16_f32 v{P + (i >> 1)}, v{S + i - 1}, v{S + i}')
        return sl

    def first_max(S, NM):
        its = [f'v_max3_f32 v{V_TM}, v{S}, v{S + 1}, v{S + 2}']
        for i in range(3, 15, 2):
            its.append(f'v_max3_f32 v{V_TM}, v{V_TM}, v{S + i}, v{S + i + 1}')
        its.append(f'v_max_f32 v{V_TM}, v{V_TM}, v{S + 15}')
        its.append(f'v_mov_b32 v{V_TM + 1}, v{V_TM}')
        its.append(f'v_permlane32_swap_b32 v{V_TM}, v{V_TM + 1}')
        its.append(f'v_max_f32 v{V_TM}, v{V_TM}, v{V_TM + 1}')
        its.append(f'v_sub_f32 v{NM}, 0, v{V_TM}')
        its += [f'v_add_f32 v{S + i}, v{S + i}, v{NM}' for i in range(16)]
        its += [f'v_mov_b32 v{NM + i}, v{NM}' for i in range(1, 16)]
        return its

    a(f'v_mov_b32 v{V_L0}, 0\nv_mov_b32 v{V_L1}, 0')
    g = [[v_read(0, i, 0), v_read(0, i, 1)] for i in range(8)]
    weave(a, qk(S0, 0, None), g)
    fm = first_max(S0, NM0)
    g = [[] for _ in range(8)]
    for i, it in enumerate(fm):
        g[min(7, 3 + i // 6)].append(it)
    weave(a, qk(S1, 1, None), g)
    emit(a, sm_items(S0, P0, V_L0))
    emit(a, first_max(S1, NM1))
    sm1 = sm_items(S1, P1, V_L1)
    g = [[k_read(0, i)] for i in range(8)]
    for i in range(6):
        g[2 + i] += sm1[i]
    weave(a, pv(0, P0, True), g)
    carry = sm1[6:]
    stamp(a)
    V_PF = V_T + 5
    DUMA = 0
    touches = {}
    tl = []
    tl.append([f'v_lshlrev_b32 v{V_PF}, 7, v{V_LANE}', f's_lshl_b32 s{S_T}, s{S_R}, 14', f's_and_b32 s{S_T + 1}, s{S_WAVE}, 1',
               f's_lshl_b32 s{S_T + 1}, s{S_T + 1}, 13', f's_add_u32 s{S_T}, s{S_T}, s{S_T + 1}', f's_add_u32 s{S_T}, s{S_T}, s{S_KV}',
               f'buffer_load_dword a{DUMA}, v{V_PF}, {sr(SWO, 4)}, s{S_T} offen'])
    if OPT.get('pfw', 1):
        tl.append([f's_lshl_b32 s{S_T}, s{S_R}, 2', f's_add_u32 s{S_T}, s{S_T}, s{S_WAVE}', f's_lshl_b32 s{S_T}, s{S_T}, 13',
                   f's_add_u32 s{S_T + 1}, s{S_T}, {128 * 8192}', f'buffer_load_dword a{DUMA + 1}, v{V_PF}, {sr(SW1, 4)}, s{S_T} offen'])
        tl.append([f'buffer_load_dword a{DUMA + 2}, v{V_PF}, {sr(SW1, 4)}, s{S_T + 1} offen'])
        tl.append([f'buffer_load_dword a{DUMA + 3}, v{V_PF}, {sr(SW2, 4)}, s{S_T} offen'])
        tl.append([f'buffer_load_dword a{DUMA + 4}, v{V_PF}, {sr(SW2, 4)}, s{S_T + 1} offen'])
    for k, its in enumerate(tl):
        touches[2 + 2 * k] = its
    for t in range(1, 16):
        mf = qk(S0, 0, NM0) + pv(1, P1, t == 1) + qk(S1, 1, NM1) + pv(0, P0, False)
        g = [[] for _ in range(32)]
        for i, sl in enumerate(carry):
            g[i] += sl
        dm = kv_dma(t + 2) if 1 < t <= 13 else []
        for i, d in enumerate(dm):
            if len(d) > 1:
                g[0] += d[:-1]
            g[1 + i + min(i, 2)].append(d[-1])
        g[7] += [waitvm(f'kv{t}'), 's_barrier']
        if t == 1:
            for i, d in enumerate(kv_dma(3)):
                g[8 + 2 * i] += d
        if t == 14:
            for i, d in enumerate(o_dma(0)):
                g[2 * i if i < 4 else 2 * i + 1] += d
        if t == 15:
            for i, d in enumerate(o_dma(1)):
                g[9 + 2 * i] += d
        for k, it in enumerate(touches.get(t, [])):
            g[9 + 2 * k].append(it)
        for i in range(8):
            g[8 + i].append(v_read(t, i, 0))
            g[16 + i].append(v_read(t, i, 1))
            if t < 15:
                g[24 + i].append(k_read(t, i))
        for i, sl in enumerate(sm_items(S0, P0, V_L0)):
            g[10 + i] += sl
        sm1 = sm_items(S1, P1, V_L1)
        for i in range(6):
            g[26 + i] += sm1[i]
        carry = sm1[6:]
        weave(a, mf, g)
    emit(a, carry)
    t, l = V_TM, V_LANE
    OA = S0 + 4

    def o_norm(Q):
        its = []
        for u in range(8):
            b = ACC + 64 * Q + 8 * u
            if Q == 0:
                its += [f'v_mul_f32 v{b + p}, v{b + p}, v{S0}' for p in range(8)]
            else:
                its += [f'v_pk_mul_f32 {vr(b + 2 * p, 2)}, {vr(b + 2 * p, 2)}, {vr(S0 + 2, 2)} op_sel_hi:[1,0]' for p in range(4)]
            d = NM0 + 4 * u
            its += [f'v_cvt_pk_bf16_f32 v{d + p}, v{b + 2 * p}, v{b + 2 * p + 1}' for p in range(4)]
            its.append(f'ds_write_b128 v{OA + u}, {vr(d, 4)} offset:{Q * 32768}')
        return its
    pre = []
    for k, Lr in enumerate((V_L0, V_L1)):
        pre += [f'v_mov_b32 v{V_TM + 2 + k}, v{Lr}']
    pre += [f'v_lshrrev_b32 v{t}, 5, v{l}', f'v_and_b32 v{t + 1}, 15, v{l}']
    for k, Lr in enumerate((V_L0, V_L1)):
        pre += [f'v_permlane32_swap_b32 v{Lr}, v{V_TM + 2 + k}']
    for k, Lr in enumerate((V_L0, V_L1)):
        pre += [f'v_add_f32 v{Lr}, v{Lr}, v{V_TM + 2 + k}']
    pre += [f'v_rcp_f32 v{S0}, v{V_L0}', f'v_rcp_f32 v{S0 + 2}, v{V_L1}']
    pre += [f'v_xor_b32 v{t}, v{t}, v{t + 1}', f'v_lshlrev_b32 v{t}, 4, v{t}', f'v_and_b32 v{t + 1}, 31, v{l}',
            f'v_lshl_add_u32 v{t}, v{t + 1}, 10, v{t}', f's_lshl_b32 s{S_T}, s{S_WAVE}, 8', f'v_add_u32 v{t}, s{S_T}, v{t}']
    pre += [f'v_xor_b32 v{OA + u}, {(2 * u) << 4}, v{t}' for u in range(8)]
    seq = pre + o_norm(0)
    g = [seq[6 * i:6 * i + 6] for i in range(8)]
    weave(a, pv(1, P1, False), g)
    emit(a, seq[48:])
    stamp(a)
    emit(a, o_norm(1))
    a.wait_vm('wo0.1')
    emit(a, a_reads(AB, oslot(0), 0, 'o0'), a_reads(AB, oslot(0), 1, 'o0'))
    a('s_waitcnt lgkmcnt(0)\ns_barrier')
    for c in range(2):
        for qt in range(4):
            a(b_read(BB + 16 * c + 4 * qt, c, qt))
    emit(a, o_dma(2))
    stamp(a)
    V_SO, V_D1, V_PL, V_XL, V_FL = 20, 21, 25, 26, 27
    PU = 28
    PH = 60
    XG = 92
    AC0 = 100
    TT = 116
    S_W1B, S_W2B, S_ROW, S_PA, S_PB, S_FO = S_U, S_U + 1, S_U + 2, S_U + 3, S_U + 4, S_U + 5
    t = TT
    su = []
    A = lambda s: su.extend(s.split('\n'))
    A(f'v_and_b32 v{t}, 15, v{l}\nv_lshlrev_b32 v{t}, 13, v{t}\nv_bfe_u32 v{t + 1}, v{l}, 4, 1\nv_lshl_add_u32 v{t}, v{t + 1}, 5, v{t}')
    A(f'v_lshrrev_b32 v{t + 1}, 5, v{l}\nv_lshl_add_u32 v{V_SO}, v{t + 1}, 4, v{t}')
    A(f's_lshl_b32 s{S_P}, s{S_R}, 19\ns_lshl_b32 s{S_T}, s{S_G}, 10\ns_add_u32 s{S_P}, s{S_P}, s{S_T}')
    A(f's_lshl_b32 s{S_T}, s{S_WAVE}, 7\ns_add_u32 s{S_P}, s{S_P}, s{S_T}\ns_add_u32 s{S_P}, s{S_P}, {WS_P1}')
    for q in range(1, 4):
        A(f's_add_u32 s{S_P + q}, s{S_P}, {q * 131072}')
    su += dw_items(3584, V_D1)
    A(f's_lshl_b32 s{S_W1B}, s{S_S}, 9\ns_lshl_b32 s{S_T}, s{S_WAVE}, 7\ns_add_u32 s{S_W1B}, s{S_W1B}, s{S_T}')
    A(f's_lshl_b32 s{S_W2B}, s{S_S}, 7\ns_lshl_b32 s{S_T}, s{S_WAVE}, 16\ns_add_u32 s{S_W2B}, s{S_W2B}, s{S_T}')
    A(f's_lshl_b32 s{S_ROW}, s{S_R2}, 6\ns_lshl_b32 s{S_T}, s{S_S}, 3\ns_add_u32 s{S_ROW}, s{S_ROW}, s{S_T}')
    A(f's_lshl_b32 s{S_T}, s{S_WAVE}, 1\ns_add_u32 s{S_ROW}, s{S_ROW}, s{S_T}')
    A(f's_lshl_b32 s{S_PA}, s{S_ROW}, 13\ns_add_u32 s{S_PA}, s{S_PA}, {WS_P1}\ns_add_u32 s{S_PB}, s{S_PA}, 4096\ns_lshl_b32 s{S_ROW}, s{S_ROW}, 10')
    A(f'v_lshrrev_b32 v{t}, 5, v{l}\nv_and_b32 v{t + 1}, 31, v{l}\nv_lshlrev_b32 v{t + 1}, 4, v{t + 1}\nv_lshl_add_u32 v{V_PL}, v{t}, 13, v{t + 1}')
    A(f'v_bfe_u32 v{t + 1}, v{l}, 3, 2\nv_lshlrev_b32 v{t + 1}, 8, v{t + 1}\nv_and_b32 v{t + 2}, 7, v{l}\nv_lshl_add_u32 v{t + 1}, v{t + 2}, 4, v{t + 1}')
    A(f'v_lshl_add_u32 v{V_XL}, v{t}, 10, v{t + 1}')
    A(f'v_bfe_u32 v{t}, v{l}, 2, 3\nv_lshlrev_b32 v{t}, 7, v{t}\nv_and_b32 v{t + 1}, 3, v{l}\nv_lshl_add_u32 v{V_FL}, v{t + 1}, 2, v{t}')
    A(f's_lshl_b32 s{S_FO}, s2, 7\ns_lshl_b32 s{S_T}, s{S_WAVE}, 2\ns_add_u32 s{S_FO}, s{S_FO}, s{S_T}\ns_add_u32 s{S_FO}, s{S_FO}, {WS_F1}')

    def o_unit(half, cp, qt, tm):
        x = ACC + 64 * half + 32 * cp + 4 * qt
        y = x + 16
        return [f'v_cvt_pk_bf16_f32 v{tm}, v{x}, v{x + 1}', f'v_cvt_pk_bf16_f32 v{tm + 2}, v{y}, v{y + 1}',
                f'v_cvt_pk_bf16_f32 v{tm + 1}, v{x + 2}, v{x + 3}', f'v_cvt_pk_bf16_f32 v{tm + 3}, v{y + 2}, v{y + 3}'], \
               [f'v_permlane16_swap_b32 v{tm}, v{tm + 2}', f'v_permlane16_swap_b32 v{tm + 1}, v{tm + 3}',
                (f'buffer_store_dwordx4 {vr(tm, 4)}, v{V_SO}, {sr(SWS, 4)}, s{S_P + qt} offen offset:{512 * half + 64 * cp} sc1', f'p{half}')]

    w1slot = lambda kb: oslot(16 + kb)
    w1reg = lambda kb: 32 * ((kb + 4) % 8)
    w1_dma = lambda kb: w_dma(SW1, S_W1B, kb * 64 * 3584, 3584, w1slot(kb), f'w1_{kb}', V_D1)
    w1_reads = lambda kb: [waitvm(f'w1_{kb}.1')] + a_reads(w1reg(kb), w1slot(kb), 0, f'f{kb}') + a_reads(w1reg(kb), w1slot(kb), 1, f'f{kb}')
    for t in range(16):
        kb, half = t & 7, t >> 3
        mf = gemm_mfmas(ACC + 64 * half, AB + 32 * (t & 1), BB + 32 * (t & 1), kb == 0)
        reads = []
        if t < 15:
            nb = AB + 32 * ((t + 1) & 1)
            bb = BB + 32 * ((t + 1) & 1)
            k1 = (t + 1) & 7
            reads += [waitvm(f'wo{t + 1}.0')] + a_reads(nb, oslot(t + 1), 0, f'o{t + 1}')
            reads += [b_read(bb + 16 * c + 4 * qt, 2 * k1 + c, qt) for qt in range(4) for c in range(2)]
            reads += [waitvm(f'wo{t + 1}.1')] + a_reads(nb, oslot(t + 1), 1, f'o{t + 1}')
        dm = o_dma(t + 3) if t + 3 < 16 else w1_dma(t - 13)
        dm[0] = [waitlds(f'o{t}.0')] + dm[0]
        dm[4] = [waitlds(f'o{t}.1')] + dm[4]
        extra = []
        if t < 8:
            for p in (3, 4, 5, 7, 8, 9, 11, 12, 19, 20, 21, 23):
                if su:
                    extra.append((p, su.pop(0)))
        if 8 <= t < 12:
            for u in range(2):
                idx = 2 * (t - 8) + u
                c, w = o_unit(0, idx >> 2, idx & 3, PU + 4 * idx)
                for k, it in enumerate(c + w):
                    extra.append((3 + 14 * u + 2 * k, it))
        if t == 14:
            extra += [(27, waitvm('p0')), (27, f'v_mov_b32 v{TT}, s{S_TAG}'), (28, 's_mov_b64 exec, 1'),
                      (28, f'buffer_store_dword v{TT}, off, {sr(SWS, 4)}, s{S_FO} sc1'), (28, 's_mov_b64 exec, -1')]
        weave(a, mf, place_step(dm, reads, extra))
    assert not su
    stamp(a)
    seq = []
    prev = []
    for idx in range(8):
        c, w = o_unit(1, idx >> 2, idx & 3, PU + 4 * idx)
        seq += c + prev
        prev = w
    emit(a, seq, ['s_nop 0'], prev)
    GA, CB = 128, 160
    V_ML = TT + 8
    a(f'v_and_b32 v{V_ML}, 0x3ff, v{V_XL}\nv_lshlrev_b32 v{V_ML}, 1, v{V_ML}')
    a(f's_mov_b32 s{S_T}, {WS_MOD + 4096}\ns_add_u32 s{S_T + 1}, s{S_T}, 4096')
    g_loads = []
    for h in range(2):
        for k in range(2):
            g_loads.append(f'buffer_load_dwordx4 {vr(GA + 8 * h + 4 * k, 4)}, v{V_ML}, {sr(SWS, 4)}, s{S_T} offen offset:{256 * h + 16 * k} sc1')
            g_loads.append(f'buffer_load_dwordx4 {vr(CB + 16 * h + 8 + 4 * k, 4)}, v{V_ML}, {sr(SWS, 4)}, s{S_T} offen offset:{2048 + 256 * h + 16 * k} sc1')
            g_loads.append(f'buffer_load_dwordx4 {vr(CB + 16 * h + 4 * k, 4)}, v{V_ML}, {sr(SWS, 4)}, s{S_T + 1} offen offset:{256 * h + 16 * k} sc1')
    emit(a, w1_reads(0), w1_reads(1), w1_reads(2))
    a.wait_vm('p1')
    a(f's_add_u32 s{S_T + 2}, s{S_FO}, 16')
    flag_store(a, S_T + 2, TT)
    stamp(a)
    a(f's_lshl_b32 s{S_T + 2}, s{S_R2}, 10\ns_add_u32 s{S_T + 2}, s{S_T + 2}, {WS_F1}')
    poll(a, [f'buffer_load_dword v{TT}, v{V_FL}, {sr(SWS, 4)}, s{S_T + 2} offen sc1'], [TT], TT + 1)

    def p_loads(half):
        return [f'buffer_load_dwordx4 {vr(PH + 4 * gg, 4)}, v{V_PL}, {sr(SWS, 4)}, s{S_PA if gg < 4 else S_PB} offen offset:{(gg & 3) * 1024 + 512 * half} sc1'
                for gg in range(8)]

    def p_sum(half):
        b = AC0 + 8 * half
        unpack8(a, b, PH)
        for gg in range(1, 8):
            unpack8(a, TT, PH + 4 * gg)
            for p in range(4):
                a(f'v_pk_add_f32 {vr(b + 2 * p, 2)}, {vr(b + 2 * p, 2)}, {vr(TT + 2 * p, 2)}')
    emit(a, p_loads(0))
    emit(a, g_loads)
    for h in range(2):
        a(f'buffer_load_dwordx4 {vr(XG + 4 * h, 4)}, v{V_XL}, {sr(SX, 4)}, s{S_ROW} offen offset:{128 * h}')
    p_sum(0)
    late_poll(a, g_loads, [GA + 1 + 2 * i for i in range(8)] + [CB + 1 + 2 * i for i in range(16)], TT)
    for h in range(2):
        unpack_gran(a, GA + 8 * h); unpack_gran(a, CB + 16 * h); unpack_gran(a, CB + 16 * h + 8)
        for i in range(8):
            a(f'v_add_f32 v{CB + 16 * h + i}, 1.0, v{CB + 16 * h + i}')
        round_bf16(a, [CB + 16 * h + i for i in range(8)], TT)
        for i in range(16):
            a(f'v_mul_f32 v{CB + 16 * h + i}, {f2u(LOG2E)}, v{CB + 16 * h + i}')
    stamp(a)
    poll(a, [f'buffer_load_dword v{TT}, v{V_FL}, {sr(SWS, 4)}, s{S_T + 2} offen offset:16 sc1'], [TT], TT + 1)
    stamp(a)
    emit(a, p_loads(1))
    a.wait_lds('f2.1')
    emit(a, w1_dma(3), w1_dma(4))
    stamp_flush(a, 0)
    stamp(a)
    p_sum(1)
    stamp(a)
    a(f's_add_u32 s{S_T}, s{S_ROW}, {WS_X1}\ns_add_u32 s{S_T + 1}, s{S_ROW}, {WS_H2}')
    SS, SQ = PH, PH + 2
    for h in range(2):
        b = AC0 + 8 * h
        unpack8(a, TT, XG + 4 * h)
        for p in range(4):
            a(f'v_pk_fma_f32 {vr(b + 2 * p, 2)}, {vr(b + 2 * p, 2)}, {vr(GA + 8 * h + 2 * p, 2)}, {vr(TT + 2 * p, 2)}')
        d = PU + 4 * h
        for p in range(4):
            a(f'v_cvt_pk_bf16_f32 v{d + p}, v{b + 2 * p}, v{b + 2 * p + 1}')
        a(f'buffer_store_dwordx4 {vr(d, 4)}, v{V_XL}, {sr(SWS, 4)}, s{S_T} offen offset:{128 * h} sc1', tag='h2')
        unpack8(a, b, d)
        row_stats(a, b, TT, SS + h, SQ + h)
    a(f'v_add_f32 v{SS}, v{SS}, v{SS + 1}\nv_add_f32 v{SQ}, v{SQ}, v{SQ + 1}')
    a(f'v_mov_b32 v{SS + 1}, v{SS}\nv_mov_b32 v{SQ + 1}, v{SQ}')
    a(f'v_permlane16_swap_b32 v{SS}, v{SS + 1}\nv_permlane16_swap_b32 v{SQ}, v{SQ + 1}')
    a(f'v_add_f32 v{SS + 1}, v{SS}, v{SS + 1}\nv_add_f32 v{SS}, v{SQ}, v{SQ + 1}')
    row_allreduce(a, [SS, SS + 1])
    ln_stats(a, [SS + 1], [SS])
    for h in range(2):
        b = AC0 + 8 * h
        s = vr(SS, 2)
        for p in range(4):
            a(f'v_pk_fma_f32 {vr(b + 2 * p, 2)}, {vr(b + 2 * p, 2)}, {s}, {s} op_sel:[0,0,1] op_sel_hi:[1,0,1]')
        for p in range(4):
            a(f'v_pk_fma_f32 {vr(b + 2 * p, 2)}, {vr(b + 2 * p, 2)}, {vr(CB + 16 * h + 2 * p, 2)}, {vr(CB + 16 * h + 8 + 2 * p, 2)}')
        d = PU + 8 + 4 * h
        for p in range(4):
            a(f'v_cvt_pk_bf16_f32 v{d + p}, v{b + 2 * p}, v{b + 2 * p + 1}')
        a(f'buffer_store_dwordx4 {vr(d, 4)}, v{V_XL}, {sr(SWS, 4)}, s{S_T + 1} offen offset:{128 * h} sc1', tag='h2')
    stamp(a)
    a(f's_lshl_b32 s{S_FO}, s{S_R2}, 3\ns_add_u32 s{S_FO}, s{S_FO}, s{S_S}\ns_lshl_b32 s{S_FO}, s{S_FO}, 7\ns_lshl_b32 s{S_T + 2}, s{S_WAVE}, 2')
    a(f's_add_u32 s{S_FO}, s{S_FO}, s{S_T + 2}\ns_add_u32 s{S_FO}, s{S_FO}, {WS_F2}')
    emit(a, w1_reads(3), w1_reads(4))
    a.wait_vm('h2')
    flag_store(a, S_FO, TT)
    stamp(a)
    a.wait_lds('f4.1')
    emit(a, w1_dma(5), w1_dma(6), w1_dma(7))
    a(f'v_and_b32 v{TT + 2}, 0xff, v{V_FL}')
    a(f's_lshl_b32 s{S_T + 2}, s{S_R2}, 10\ns_lshl_b32 s{S_T + 3}, s{S_WAVE}, 8\ns_add_u32 s{S_T + 2}, s{S_T + 2}, s{S_T + 3}\ns_add_u32 s{S_T + 2}, s{S_T + 2}, {WS_F2}')
    a('s_barrier')
    poll(a, [f'buffer_load_dword v{TT}, v{TT + 2}, {sr(SWS, 4)}, s{S_T + 2} offen sc1'], [TT], TT + 1)
    stamp(a)
    a(f's_lshl_b32 s{S_T}, s{S_R2}, 16\ns_lshl_b32 s{S_T + 1}, s{S_WAVE}, 14\ns_add_u32 s{S_T}, s{S_T}, s{S_T + 1}\ns_add_u32 s{S_T}, s{S_T}, {WS_H2}')
    V_L16 = 20
    a(f'v_lshlrev_b32 v{V_L16}, 4, v{V_LANE}')
    for i in range(16):
        if i % 4 == 0:
            a(f's_add_u32 m0, s{S_T + 1}, {i * 1024}')
            if i:
                a(f's_add_u32 s{S_T}, s{S_T}, 4096')
        a(f'v_xor_b32 v{TT + i % 2}, {i << 4}, v{V_L16}')
        a(f'buffer_load_dwordx4 v{TT + i % 2}, {sr(SWS, 4)}, s{S_T} offen offset:{(i % 4) * 1024} sc1 lds', tag='h2i')
    w2slot = lambda i: w1slot(8 + i)
    w2_dma = lambda i: w_dma(SW2, S_W2B, i * 4 * 64 * 1024, 1024, w2slot(i), f'w2_{i}')
    W2V = 128
    w2loc = lambda i: (W2V + 32 * i, 'v') if i < 4 else (32 * (i - 4), 'a')
    w2_reads = lambda i: [waitvm(f'w2_{i}.1')] + a_reads(w2loc(i)[0], w2slot(i), 0, f'e{i}', w2loc(i)[1]) + a_reads(w2loc(i)[0], w2slot(i), 1, f'e{i}', w2loc(i)[1])
    emit(a, w1_reads(5), w1_reads(6), w1_reads(7))
    a.wait_lds('f7.1')
    emit(a, w2_dma(0), w2_dma(1), w2_dma(2))
    FA, FB, TM, V_HS = 24, 56, 96, 21
    NB = 10
    t = 120
    a(f'v_and_b32 v{t}, 15, v{l}\nv_lshlrev_b32 v{t}, 4, v{t}\nv_bfe_u32 v{t + 1}, v{l}, 4, 1\nv_lshl_add_u32 v{t}, v{t + 1}, 9, v{t}')
    a(f'v_lshrrev_b32 v{t + 1}, 5, v{l}\nv_lshl_add_u32 v{V_HS}, v{t + 1}, 8, v{t}')
    S_H, S_HS = S_PA, S_P
    a(f's_mul_i32 s{S_H}, s{S_R2}, 28\ns_add_u32 s{S_H}, s{S_H}, s{S_WAVE}\ns_lshl_b32 s{S_H}, s{S_H}, 13\ns_add_u32 s{S_H}, s{S_H}, {WS_HB}')
    a(f's_lshl_b32 s{S_HS}, s{S_S}, 15\ns_add_u32 s{S_HS}, s{S_HS}, s{S_H}\ns_add_u32 s{S_HS + 1}, s{S_HS}, 4096')
    a(f's_add_u32 s{S_FO}, s{S_FO}, {WS_F3 - WS_F2}')
    a.wait_vm('h2i')
    a('s_barrier')
    stamp(a)

    def epi(qt):
        its = []
        for cp in range(2):
            x = FA + 16 * (qt & 1) + 8 * cp
            e = TM + 8 * cp
            its += [f'v_exp_f32_e64 v{e + i}, -v{x + i}' for i in range(8)]
            its += [f'v_add_f32 v{e + i}, 1.0, v{e + i}' for i in range(8)]
            its += [f'v_rcp_f32 v{e + i}, v{e + i}' for i in range(8)]
            its += [f'v_mul_f32 v{e + i}, v{e + i}, v{x + i}' for i in range(8)]
            tm = TM + 16 + 4 * cp
            its += [f'v_cvt_pk_bf16_f32 v{tm}, v{e}, v{e + 1}', f'v_cvt_pk_bf16_f32 v{tm + 2}, v{e + 4}, v{e + 5}',
                    f'v_cvt_pk_bf16_f32 v{tm + 1}, v{e + 2}, v{e + 3}', f'v_cvt_pk_bf16_f32 v{tm + 3}, v{e + 6}, v{e + 7}',
                    f'v_permlane16_swap_b32 v{tm}, v{tm + 2}', f'v_permlane16_swap_b32 v{tm + 1}, v{tm + 3}',
                    (f'buffer_store_dwordx4 {vr(tm, 4)}, v{V_HS}, {sr(SWS, 4)}, s{S_HS + cp} offen offset:{qt * 1024} sc1', f'hs{qt}')]
        return its

    stage = {0: w2_reads(0) + [waitlds('e0.1')] + w2_dma(3),
             1: w2_reads(1) + [waitlds('e1.1')] + w2_dma(4),
             2: w2_reads(2) + [waitlds('e2.1')] + w2_dma(5),
             3: w2_reads(3) + [waitlds('e3.1')] + w2_dma(6)}
    a(f's_cmp_eq_u32 s{S_S}, 7\ns_cbranch_scc1 L_nof1')
    bslot = lambda j: FB + 4 * (j % NB)
    for j in range(6):
        a(b_read(bslot(j), j & 15, j >> 4, 'v'))
    for qt in range(4):
        mf = []
        for kq in range(4):
            for d in range(4):
                for k4 in range(4):
                    ks = 4 * kq + k4
                    D = vr(FA + 16 * (qt & 1) + 4 * d, 4)
                    mf.append(f'v_mfma_f32_16x16x32_bf16 {D}, {ar(w1reg(ks >> 1) + 8 * d + 4 * (ks & 1), 4)}, {vr(bslot(16 * qt + ks), 4)}, '
                              + ('0' if ks == 0 else D))
        g = [[] for _ in range(64)]
        load = [0] * 64
        for kq in range(4):
            for k4 in range(4):
                j = 16 * qt + 4 * kq + k4 + 6
                if j < 64:
                    p = 16 * kq + 2 * k4
                    g[p].append(b_read(bslot(j), j & 15, j >> 4, 'v'))
                    load[p] += 1
        flat = []
        for it in stage[qt]:
            flat += it if isinstance(it, list) else [it]
        streams = [flat]
        if qt > 0:
            streams.append(epi(qt - 1))
        for si, its in enumerate(streams):
            gi = 1 if si == 0 else 5
            n_real = sum(1 for it in its if not isinstance(it, Ins))
            stepf = (62.0 - gi) / max(1, n_real) if si == 0 else 0
            pos = float(gi)
            for it in its:
                if isinstance(it, Ins):
                    g[int(pos)].append(it)
                    continue
                txt = it[0] if isinstance(it, tuple) else it
                c = 2 if ('v_exp' in txt or 'v_rcp' in txt) else 1
                if si == 0:
                    g[int(pos)].append(it)
                    load[int(pos)] += c
                    pos += stepf
                else:
                    while load[gi] + c > 3 and gi < 63:
                        gi += 1
                    g[gi].append(it)
                    load[gi] += c
        if qt == 3:
            g[63] += [waitvm('hs1'), f'v_mov_b32 v{t}, s{S_TAG}', 's_mov_b64 exec, 1',
                      f'buffer_store_dword v{t}, off, {sr(SWS, 4)}, s{S_FO} sc1', 's_mov_b64 exec, -1']
        weave(a, mf, g)
    emit(a, epi(3))
    a.wait_vm('hs3')
    a(f's_add_u32 s{S_T}, s{S_FO}, 16')
    flag_store(a, S_T, t)
    a('s_branch L_f1done')
    a.label('L_nof1')
    a('s_waitcnt vmcnt(0) lgkmcnt(0)')
    for qt in range(4):
        emit(a, stage[qt])
    a.label('L_f1done')
    a('s_waitcnt vmcnt(0) lgkmcnt(0)')
    stamp(a)
    emit(a, w2_reads(4), w2_reads(5), w2_reads(6))
    GACC, X1, GB, V_F3, V_OS = 24, 88, 96, 22, 23
    HB0 = 96
    t = 112
    a(f'v_min_u32 v{t}, 6, v{l}\nv_lshlrev_b32 v{V_F3}, 7, v{t}')
    a(f's_lshl_b32 s{S_T + 2}, s{S_R2}, 10\ns_lshl_b32 s{S_T + 3}, s{S_WAVE}, 2\ns_add_u32 s{S_T + 2}, s{S_T + 2}, s{S_T + 3}\ns_add_u32 s{S_T + 2}, s{S_T + 2}, {WS_F3}')
    hreg = lambda ps, i, c, q: HB0 + 4 * ((28 * ps + 4 * i + 2 * c + q) % 40)

    def h_loads(ps, i):
        out = []
        for c in range(2):
            for q in range(2):
                gq = []
                if q == 0:
                    gq.append(f's_add_u32 s{S_T}, s{S_H}, {i * 32768 + c * 4096}')
                gq.append(f'buffer_load_dwordx4 {ar(hreg(ps, i, c, q), 4)}, v{V_L16}, {sr(SWS, 4)}, s{S_T} offen offset:{(2 * ps + q) * 1024} sc1')
                out.append(gq)
        return out
    poll(a, [f'buffer_load_dword v{t}, v{V_F3}, {sr(SWS, 4)}, s{S_T + 2} offen sc1'], [t], t + 1)
    stamp(a)
    for i in range(7):
        emit(a, h_loads(0, i))
    a(f'v_and_b32 v{t}, 15, v{l}\nv_lshlrev_b32 v{t}, 10, v{t}\nv_lshrrev_b32 v{t + 1}, 4, v{l}\nv_lshl_add_u32 v{t + 2}, v{t + 1}, 3, v{t}')
    a(f'v_lshlrev_b32 v{t + 3}, 4, v{t + 1}')
    S_O = S_P
    a(f's_lshl_b32 s{S_O}, s{S_R2}, 16\ns_lshl_b32 s{S_O + 1}, s{S_WAVE}, 14\ns_add_u32 s{S_O}, s{S_O}, s{S_O + 1}\ns_lshl_b32 s{S_O + 1}, s{S_S}, 7\ns_add_u32 s{S_O}, s{S_O}, s{S_O + 1}')
    a(f's_add_u32 s{S_O + 1}, s{S_O}, {WS_X1}\ns_lshl_b32 s{S_O + 2}, s{S_S}, 8\ns_add_u32 s{S_O + 2}, s{S_O + 2}, {WS_MOD + 5 * 2048}')
    a(f'v_bfe_u32 v{t + 1}, v{l}, 4, 1\nv_lshl_add_u32 v{t}, v{t + 1}, 5, v{t}\nv_lshrrev_b32 v{t + 1}, 5, v{l}\nv_lshl_add_u32 v{V_OS}, v{t + 1}, 4, v{t}')
    f3b = f'buffer_load_dword v{t + 4}, v{V_F3}, {sr(SWS, 4)}, s{S_T + 2} offen offset:16 sc1'

    def f2_mfmas(ps, i):
        out = []
        ab, ak = w2loc(i)
        for d in range(4):
            for q in range(2):
                for c in range(2):
                    D = vr(GACC + 16 * d + 4 * (2 * ps + q), 4)
                    out.append(f'v_mfma_f32_16x16x32_bf16 {D}, {vr(ab + 8 * d + 4 * c, 4, ak)}, {ar(hreg(ps, i, c, q), 4)}, '
                               + ('0' if i == 0 and c == 0 else D))
        return out
    a(f3b)
    for i in range(4):
        emit(a, f2_mfmas(0, i))
    late_poll(a, [f3b], [t + 4], t + 5)
    stamp(a)
    pend = [gq for i in range(7) for gq in h_loads(1, i)]
    for i in range(4, 7):
        n = 12 if i == 4 else 8
        gg = [[] for _ in range(16)]
        for k, gq in enumerate(pend[:n]):
            gg[k * 16 // n] += gq
        pend = pend[n:]
        weave(a, f2_mfmas(0, i), gg)
    gb_loads = [f'buffer_load_dwordx4 {vr(GB + 4 * ct, 4)}, v{t + 3}, {sr(SWS, 4)}, s{S_O + 2} offen offset:{64 * ct} sc1' for ct in range(4)]
    for ct in range(4):
        a(f'buffer_load_dwordx2 {vr(X1 + 2 * ct, 2)}, v{t + 2}, {sr(SWS, 4)}, s{S_O + 1} offen offset:{32 * ct} sc1')
    emit(a, gb_loads)
    for i in range(7):
        emit(a, f2_mfmas(1, i))
    stamp(a)
    late_poll(a, gb_loads, [GB + 1 + 2 * i for i in range(8)], t + 5)
    RB = 128
    a(f's_lshl_b32 s{S_T}, s{S_WAVE}, 14\nv_add_u32 v{t}, s{S_T}, v{V_L16}')
    a(f's_lshl_b32 s{S_T}, s{S_WAVE}, 12\nv_add_u32 v{t + 1}, s{S_T}, v{V_L16}')
    a('s_barrier')
    for qt in range(4):
        for ct in range(4):
            a(f'ds_write_b128 v{t}, {vr(GACC + 16 * ct + 4 * qt, 4)} offset:{qt * 4096 + ct * 1024}')
    unpack_gran(a, GB); unpack_gran(a, GB + 8)
    for i in range(16):
        a(f'v_mul_f32 v{GB + i}, {f2u(1.0 / LOG2E)}, v{GB + i}')
    XU = 192
    for ct in range(4):
        for p in range(2):
            r = X1 + 2 * ct + p
            a(f'v_lshlrev_b32 v{XU + 4 * ct + 2 * p}, 16, v{r}\nv_and_b32 v{XU + 4 * ct + 2 * p + 1}, 0xffff0000, v{r}')
    a('s_waitcnt lgkmcnt(0)\ns_barrier')
    for ct in range(4):
        for w in range(4):
            a(f'ds_read_b128 {vr(RB + 16 * w + 4 * ct, 4)}, v{t + 1} offset:{w * 16384 + ct * 1024}')
    for p in range(8):
        b = RB + 2 * p
        a(f'v_pk_add_f32 {vr(b, 2)}, {vr(b, 2)}, {vr(b + 16, 2)}')
        a(f'v_pk_add_f32 {vr(b + 32, 2)}, {vr(b + 32, 2)}, {vr(b + 48, 2)}')
        a(f'v_pk_add_f32 {vr(b, 2)}, {vr(b, 2)}, {vr(b + 32, 2)}')
        a(f'v_pk_fma_f32 {vr(b, 2)}, {vr(b, 2)}, {vr(GB + 2 * p, 2)}, {vr(XU + 2 * p, 2)}')
    for cp in range(2):
        x = RB + 8 * cp
        tm = 208 + 4 * cp
        a(f'v_cvt_pk_bf16_f32 v{tm}, v{x}, v{x + 1}\nv_cvt_pk_bf16_f32 v{tm + 2}, v{x + 4}, v{x + 5}')
        a(f'v_cvt_pk_bf16_f32 v{tm + 1}, v{x + 2}, v{x + 3}\nv_cvt_pk_bf16_f32 v{tm + 3}, v{x + 6}, v{x + 7}')
        a(f'v_permlane16_swap_b32 v{tm}, v{tm + 2}\nv_permlane16_swap_b32 v{tm + 1}, v{tm + 3}')
        a(f'buffer_store_dwordx4 {vr(tm, 4)}, v{V_OS}, {sr(SOUT, 4)}, s{S_O} offen offset:{64 * cp}')
    stamp(a)
    if OPT['stamps']:
        a('s_waitcnt vmcnt(0)')
    stamp(a)
    stamp_flush(a, 1)
    a.label('L_end')
    a('s_endpgm')


def build(**opt):
    OPT.update(opt)
    _st['n'] = 0
    a = Asm()
    gen(a)
    body = a.finish()
    txt = f'; @launch grid=(256,1,1) block=(256,1,1) lds={160 * 1024}\n.amdgcn_target "amdgcn-amd-amdhsa--gfx950"\n.text\n' + body
    txt += f'''.section .rodata,"a"
.p2align 6
.amdhsa_kernel {KN}
  .amdhsa_next_free_vgpr 512
  .amdhsa_next_free_sgpr 102
  .amdhsa_accum_offset 256
  .amdhsa_group_segment_fixed_size 0
  .amdhsa_kernarg_size 104
  .amdhsa_user_sgpr_count 2
  .amdhsa_user_sgpr_kernarg_segment_ptr 1
  .amdhsa_system_sgpr_workgroup_id_x 1
.end_amdhsa_kernel
'''
    return txt, a


if __name__ == '__main__':
    out = sys.argv[1]
    opt = {}
    for kv in sys.argv[2:]:
        k, v = kv.split('=')
        opt[k] = int(v) if v.lstrip('-').isdigit() else v
    txt, a = build(**opt)
    open(out, 'w').write(txt)
    print('instructions:', sum(1 for x in a.L if x.kind is None), 'pads:', a.npad, 'bytes of text:', len(txt))
    if opt.get('notes'):
        for nline in a.notes:
            print('  ', nline)
```
